```python
import torch

def _softmax(x, axis=-1):
    return torch.softmax(x, dim=axis)
def _gelu(x):
    return torch.nn.functional.gelu(x, approximate="tanh")
def _silu(x):
    return torch.nn.functional.silu(x)
def _sigmoid(x):
    return torch.sigmoid(x)
def _layernorm(x, axis=-1, eps=1e-5):
    m = x.mean(dim=axis, keepdim=True)
    v = x.var(dim=axis, keepdim=True, unbiased=False)
    return (x - m) / torch.sqrt(v + eps)
def _scatter_add(tgt, idx, src, axis=0):
    return tgt.clone().index_add_(axis, idx, src)
def _segment_sum(src, seg, n):
    out = torch.zeros((n,) + src.shape[1:], dtype=src.dtype)
    return out.index_add_(0, seg, src)
def _pad(x, pw):
    flat = tuple(v for pair in reversed(pw) for v in pair)
    return torch.nn.functional.pad(x, flat)

kernel_name = 'parallel_sum__sliding_block__glu_gated_glu__prompt'

def setup_inputs():

    _w = (lambda a: (lambda t: t.to(torch.bfloat16) if t.is_floating_point() else t)(torch.as_tensor(a)))
    def _A_setup():
        B, S, D = 1, 2048, 640
        return {
            "x": _w((lambda *s: torch.randn(*s, dtype=torch.bfloat16) * 0.05)(B, S, D)),
            "wqkv": _w((lambda *s: torch.randn(*s, dtype=torch.bfloat16) * 0.05)(D, 3 * D)),
            "wo": _w((lambda *s: torch.randn(*s, dtype=torch.bfloat16) * 0.05)(D, D)),
        }
    _A_in = _A_setup()

    def _B_setup():
        B, S, D, F = 1, 2048, 640, 1728
        return {
            "x": _w((lambda *s: torch.randn(*s, dtype=torch.bfloat16) * 0.05)(B, S, D)),
            "w_gate": _w((lambda *s: torch.randn(*s, dtype=torch.bfloat16) * 0.05)(D, F)),
            "w_up": _w((lambda *s: torch.randn(*s, dtype=torch.bfloat16) * 0.05)(D, F)),
            "w_down": _w((lambda *s: torch.randn(*s, dtype=torch.bfloat16) * 0.05)(F, D)),
        }
    _B_in = _B_setup()

    return {
        "A_x": _A_in["x"],
        "A_wqkv": _A_in["wqkv"],
        "A_wo": _A_in["wo"],
        "B_x": _B_in["x"],
        "B_w_gate": _B_in["w_gate"],
        "B_w_up": _B_in["w_up"],
        "B_w_down": _B_in["w_down"],
    }

def reference(A_x, A_wqkv, A_wo, B_x, B_w_gate, B_w_up, B_w_down):
    def _A_ref(x, wqkv, wo):
        B, S, D = x.shape
        H = 32; Dh = D // H; W = 256
        qkv = (lambda x, *d: x.permute(*d))((x @ wqkv).reshape(B, S, 3, H, Dh), 2, 0, 3, 1, 4)
        q, k, v = qkv[0], qkv[1], qkv[2]
        scores = torch.einsum("bhqd,bhkd->bhqk", q, k) * (Dh ** -0.5)
        idx = torch.arange(S)
        mask = (idx[:, None] - idx[None, :] >= 0) & (idx[:, None] - idx[None, :] < W)
        scores = torch.where(mask[None, None], scores, -1e9)
        p = _softmax(scores, axis=-1)
        o = torch.einsum("bhqk,bhkd->bhqd", p, v)
        return (lambda x, *d: x.permute(*d))(o, 0, 2, 1, 3).reshape(B, S, D) @ wo

    def _B_ref(x, w_gate, w_up, w_down):
        g = torch.einsum("bsd,df->bsf", x, w_gate)
        u = torch.einsum("bsd,df->bsf", x, w_up)
        h = _sigmoid(g) * u
        return torch.einsum("bsf,fd->bsd", h, w_down)

    x = A_x
    xn = _layernorm(x, axis=-1)
    return x + _A_ref(xn, A_wqkv, A_wo) + _B_ref(xn, B_w_gate, B_w_up, B_w_down)
```

```python
from emit import *
WS_XN  = 0x0000000
WS_QF1 = 0x0400000
WS_QF2 = 0x0600000
WS_KF1 = 0x0800000
WS_KF2 = 0x0A00000
WS_VF  = 0x0C00000
WS_ACT = 0x1000000
WS_W3  = 0x1A00000
WS_SIZE = 0x2000000
NKS = 74
VT = 1344
VH = 64*VT
QSCALE = 0x3ea52a10
import struct, math
QSCALE = struct.unpack('<I', struct.pack('<f', 20**-0.5*math.log2(math.e)))[0]
OOB = 0x80000000
KA_X, KA_WQKV, KA_WO, KA_BX, KA_WG, KA_WU, KA_WD, KA_OUT, KA_DBG, KA_WS = [8*i for i in range(10)]

def srd(E, d, lo, hi, nbytes):
    E.I(f's_mov_b32 s{d}, s{lo}')
    E.I(f's_and_b32 s{d+1}, s{hi}, 0xffff')
    E.I(f's_mov_b32 s{d+2}, {nbytes}')
    E.I(f's_mov_b32 s{d+3}, 0x20000')

def halfsum(E, v, tmp):
    E.I(f'v_mov_b32 v{tmp}, v{v}')
    E.I(f'v_permlane32_swap_b32 v{v}, v{tmp}')
    E.I(f'v_add_f32 v{v}, v{v}, v{tmp}')

def wavesum(E, v, tmp):
    for m in (1, 2, 4, 8, 16):
        E.I(f'ds_swizzle_b32 v{tmp}, v{v} offset:{(m << 10) | 0x1f}')
        E.I(f'v_add_f32 v{v}, v{v}, v{tmp}')
    halfsum(E, v, tmp)
```

```python
import re

TRANS = ('v_exp_f32','v_log_f32','v_rcp_f32','v_rsq_f32','v_sqrt_f32','v_sin_f32','v_cos_f32','v_rcp_iflag_f32')

def regs_of(tok):
    tok = tok.strip()
    neg = tok
    tok = tok.lstrip('-')
    if tok.startswith('abs(') and tok.endswith(')'): tok = tok[4:-1]
    if tok.startswith('|') and tok.endswith('|'): tok = tok[1:-1]
    m = re.fullmatch(r'([vas])(\d+)', tok)
    if m: return [(m.group(1), int(m.group(2)))]
    m = re.fullmatch(r'([vas])\[(\d+):(\d+)\]', tok)
    if m: return [(m.group(1), i) for i in range(int(m.group(2)), int(m.group(3))+1)]
    if tok == 'vcc': return [('x','vcc')]
    if tok in ('vcc_lo','vcc_hi'): return [('x','vcc')]
    if tok in ('exec','exec_lo','exec_hi'): return [('x','exec')]
    if tok == 'm0': return [('x','m0')]
    if tok == 'scc': return [('x','scc')]
    return []

def split_ops(s):
    out, depth, cur = [], 0, ''
    for ch in s:
        if ch in '[(': depth += 1
        if ch in '])': depth -= 1
        if ch == ',' and depth == 0:
            out.append(cur.strip()); cur = ''
        else: cur += ch
    if cur.strip(): out.append(cur.strip())
    return out

class Ins:
    __slots__ = ('text','mn','reads','writes','kind','mods','passes','srcC','lds_dma','srcAB')

def parse(text):
    t = text.split(';')[0].strip()
    m = re.match(r'(\S+)\s*(.*)', t)
    mn, rest = m.group(1), m.group(2)
    ops = split_ops(rest)
    mods = ''
    if ops:
        last = ops[-1]
        parts = last.split()
        ops[-1] = parts[0]
        mods = ' '.join(parts[1:])
    I = Ins(); I.text = text; I.mn = mn; I.mods = mods; I.reads = []; I.writes = []; I.kind = 'other'
    I.passes = 0; I.srcC = []; I.lds_dma = False; I.srcAB = []
    R = lambda i: regs_of(ops[i]) if i < len(ops) else []
    base = re.sub(r'_(e32|e64|dpp|sdwa)$', '', mn)
    if mn.startswith('v_mfma'):
        I.kind = 'mfma'
        I.writes = R(0); I.srcAB = R(1) + R(2); I.srcC = R(3); I.reads = I.srcAB + I.srcC
        I.passes = 8 if ('32x32x16' in mn or '32x32x8_bf16' in mn) else (4 if '16x16x32' in mn else 16)
    elif mn.startswith('ds_'):
        I.kind = 'ds'
        if mn.startswith('ds_read') or mn.startswith('ds_bpermute') or mn.startswith('ds_swizzle') or mn.startswith('ds_permute'):
            I.writes = R(0)
            for i in range(1, len(ops)): I.reads += R(i)
        else:
            for i in range(len(ops)): I.reads += R(i)
    elif mn.startswith('buffer_') or mn.startswith('global_'):
        I.kind = 'vmem'
        allm = (mods + ' ' + ' '.join(ops)).split()
        if mn in ('buffer_inv','buffer_wbl2'):
            I.kind = 'vmem'
        elif 'lds' in mods.split() or mn.startswith('global_load_lds'):
            I.lds_dma = True
            for i in range(len(ops)): I.reads += R(i)
            I.reads.append(('x','m0'))
        elif '_load' in mn:
            I.writes = R(0)
            for i in range(1, len(ops)): I.reads += R(i)
        elif '_store' in mn:
            for i in range(len(ops)): I.reads += R(i)
            I.kind = 'vmem';
        elif 'atomic' in mn:
            for i in range(len(ops)): I.reads += R(i)
            if 'sc0' in mods.split(): I.writes = R(0)
        else:
            raise ValueError(text)
    elif mn.startswith('s_load') or mn.startswith('s_buffer_load') or mn in ('s_memtime','s_memrealtime'):
        I.kind = 'smem'; I.writes = R(0)
        for i in range(1, len(ops)): I.reads += R(i)
    elif mn.startswith('s_'):
        I.kind = 'salu'
        nodst = ('s_cmp','s_cbranch','s_branch','s_waitcnt','s_barrier','s_nop','s_setprio','s_sleep','s_endpgm','s_bitcmp','s_setreg','s_sethalt')
        if any(mn.startswith(p) for p in nodst):
            for i in range(len(ops)): I.reads += R(i)
        else:
            I.writes = R(0)
            for i in range(1, len(ops)): I.reads += R(i)
            if 'saveexec' in mn: I.writes += [('x','exec')]; I.reads += [('x','exec')]
            if mn in ('s_addk_i32','s_mulk_i32'): I.reads += R(0)
    elif mn.startswith('v_'):
        I.kind = 'valu'
        if base in TRANS: I.kind = 'trans'
        if base.startswith('v_cmp'):
            I.writes = R(0)
            for i in range(1, len(ops)): I.reads += R(i)
            if base.startswith('v_cmpx'): I.writes += [('x','exec')]
        elif base.startswith('v_permlane') and 'swap' in base:
            I.writes = R(0) + R(1); I.reads = R(0) + R(1); I.kind = 'permlane'
        elif base in ('v_fmac_f32','v_dot2c_f32_bf16','v_pk_fmac_f16','v_fmaak_f32x'):
            I.writes = R(0)
            for i in range(0, len(ops)): I.reads += R(i)
        elif base in ('v_add_co_u32','v_sub_co_u32','v_addc_co_u32','v_subb_co_u32','v_subrev_co_u32'):
            I.writes = R(0) + R(1)
            for i in range(2, len(ops)): I.reads += R(i)
        elif base in ('v_readfirstlane_b32','v_readlane_b32'):
            I.writes = R(0);
            for i in range(1, len(ops)): I.reads += R(i)
            I.kind = 'readlane'
        else:
            I.writes = R(0)
            for i in range(1, len(ops)): I.reads += R(i)
            if mn.endswith('_dpp') or 'row_' in mods or 'quad_perm' in mods:
                I.reads += R(0); I.kind = 'dpp'
    else:
        raise ValueError('unknown instr: ' + text)
    return I

VALU_KINDS = ('valu','trans','permlane','readlane','dpp')

class Emitter:
    def __init__(self, auto=True):
        self.lines = []
        self.auto = auto
        self.reset_state()
        self.nops = 0
        self.nop_log = []
        self.count = {}
    def reset_state(self):
        self.pos = 0
        self.vm = []
        self.lg = []
        self.sm = []
        self.vm_n = 0; self.lg_n = 0
        self.last = {}
        self.lastC = {}
        self.laststore = {}
    def raw(self, s):
        self.lines.append(s)
    def label(self, name):
        self.lines.append(name + ':')
    def comment(self, s):
        self.lines.append('; ' + s)
    def _nop(self, n, why):
        self.nops += n
        self.nop_log.append((n, why))
        while n > 0:
            k = min(n, 16)
            self.lines.append(f's_nop {k-1}')
            self.pos += k; n -= k
    def _wait(self, vm=None, lg=None):
        parts = []
        if vm is not None:
            vm = min(vm, 63)
            parts.append(f'vmcnt({vm})')
            while len(self.vm) > vm: self.vm.pop(0)
        if lg is not None:
            lg = min(lg, 15)
            parts.append(f'lgkmcnt({lg})')
            while len(self.lg) > lg: self.lg.pop(0)
            if lg == 0: self.sm = []
        self.lines.append('s_waitcnt ' + ' '.join(parts))
        self.pos += 1
    def waitcnt(self, vm=None, lg=None):
        self._wait(vm, lg)
    def wait_tag(self, tag):
        idx = [i for i, o in enumerate(self.vm) if o['tag'] == tag]
        if idx:
            self._wait(vm=len(self.vm) - 1 - idx[-1])
    def wait_lds_all(self):
        if self.lg or self.sm: self._wait(lg=0)
    def drain(self):
        self._wait(vm=0, lg=0)
    def fence(self):
        self._wait(vm=0, lg=0)
        self._nop(16, 'fence'); self.last = {}; self.lastC = {}; self.laststore = {}
    def need(self, I):
        need = 0; why = ''
        def req(dist_needed, p, w):
            nonlocal need, why
            have = self.pos - p - 1
            if dist_needed - have > need:
                need = dist_needed - have; why = w
        touch_r = I.reads; touch_w = I.writes
        for r in touch_r:
            L = self.last.get(r)
            if not L: continue
            p, k, ps = L
            if k == 'mfma':
                if I.kind == 'mfma':
                    if r in I.srcAB: req({4:8, 8:12, 16:20}[ps], p, f'mfma D->AB {r}')
                    else:
                        if not (I.srcC and self.last.get(I.srcC[0]) == L and self.last.get(I.srcC[-1]) == L and getattr(self,'mf_first',{}).get(p) == (I.srcC[0], len(I.srcC), I.passes)):
                            req({4:6, 8:10, 16:18}[ps], p, f'mfma D->C overlap {r}')
                else:
                    req({4:8, 8:12, 16:20}[ps], p, f'mfma D->read {r} by {I.mn}')
            elif k in VALU_KINDS:
                if I.kind == 'mfma': req(2, p, f'valu->mfma {r}')
                if r[0] in ('s','x') and r != ('x','exec') :
                    if I.kind == 'vmem': req(5, p, f'valu sgpr->vmem {r}')
                    elif I.kind in VALU_KINDS: req(2 if I.kind != 'readlane' else 4, p, f'valu sgpr->valu {r}')
                    elif I.kind == 'salu': req(4, p, f'valu sgpr->salu {r}')
                    elif I.kind == 'smem': req(5, p, f'valu sgpr->smem {r}')
                if r == ('x','exec'): req(5, p, 'valu exec')
                if r[0] in ('v','a'):
                    if I.kind == 'readlane': req(1, p, f'valu->readlane {r}')
                    if I.kind in ('permlane','dpp'): req(2, p, f'valu->permlane/dpp {r}')
                    if k == 'trans' and I.kind in VALU_KINDS + ('mfma',): req(1 if I.kind!='mfma' else 2, p, f'trans->use {r}')
                    if k == 'trans' and I.kind in ('vmem','ds'): req(1, p, f'trans->mem {r}')
            elif k == 'salu':
                if r == ('x','m0') and I.lds_dma: req(1, p, 'm0->dma')
        for r in touch_w:
            L = self.last.get(r)
            if L and L[1] == 'mfma':
                p, k, ps = L
                if I.kind == 'mfma':
                    if not (I.srcC and r in I.srcC and getattr(self,'mf_first',{}).get(p) == (I.srcC[0], len(I.srcC), I.passes)):
                        req({4:8, 8:12, 16:20}[ps], p, f'mfma D WAW mfma {r}')
                else:
                    req({4:8, 8:12, 16:20}[ps], p, f'mfma D->write {r} by {I.mn}')
            C = self.lastC.get(r)
            if C and I.kind != 'mfma':
                req({4:3, 8:7, 16:15}[C[1]], C[0], f'mfma C WAR {r}')
            S = self.laststore.get(r)
            if S is not None:
                req(2, S, f'store data WAR {r}')
        return need, why
    def I(self, text, tag=None):
        for line in text.strip().split('\n'):
            line = line.strip()
            if not line or line.startswith(';'):
                if line: self.lines.append(line)
                continue
            if line.endswith(':'):
                self.lines.append(line); continue
            self._one(line, tag)
    def _one(self, text, tag):
        I = parse(text)
        self.count[I.kind] = self.count.get(I.kind, 0) + 1
        if self.auto:
            touched = set(I.reads) | set(I.writes)
            idx = -1
            for i, o in enumerate(self.vm):
                if o['regs'] & touched: idx = i
            vmw = None
            if idx >= 0: vmw = len(self.vm) - 1 - idx
            idx = -1
            for i, o in enumerate(self.lg):
                if o['regs'] & touched: idx = i
            lgw = None
            if idx >= 0: lgw = len(self.lg) - 1 - idx
            if self.sm and (set(self.sm) & touched): lgw = 0
            if self.sm and lgw is not None: lgw = 0
            if vmw is not None or lgw is not None: self._wait(vmw, lgw)
            n, why = self.need(I)
            if n > 0: self._nop(n, why + ' @ ' + text)
        self.lines.append(text)
        if I.mn == 's_nop':
            m = re.search(r's_nop\s+(\d+)', text); self.pos += int(m.group(1)) + 1
            return
        if I.mn == 's_waitcnt':
            raise ValueError('use waitcnt()')
        p = self.pos
        if I.kind == 'vmem':
            self.vm.append({'regs': set(I.writes), 'tag': tag})
            if '_store' in I.mn and ('x4' in I.mn or 'x3' in I.mn):
                for r in I.reads[:4]: self.laststore[r] = p
            if len(self.vm) > 63:
                self._wait(vm=62)
        elif I.kind == 'ds':
            self.lg.append({'regs': set(I.writes), 'tag': tag})
        elif I.kind == 'smem':
            self.sm += I.writes
            self.lg.append({'regs': set(), 'tag': 'smem'})
        if I.kind == 'mfma':
            if not hasattr(self, 'mf_first'): self.mf_first = {}
            self.mf_first[p] = (I.writes[0], len(I.writes), I.passes)
            for r in I.srcC: self.lastC[r] = (p, I.passes)
        for r in I.writes:
            if I.kind in ('vmem','ds','smem'):
                self.last.pop(r, None)
            else:
                self.last[r] = (p, I.kind, I.passes)
        self.pos += 1
    def text(self):
        return '\n'.join(self.lines) + '\n'

KD_TMPL = """.section .rodata,"a"
.p2align 6
.amdhsa_kernel {name}
  .amdhsa_next_free_vgpr {vgpr}
  .amdhsa_next_free_sgpr {sgpr}
  .amdhsa_accum_offset {accum}
  .amdhsa_group_segment_fixed_size 0
  .amdhsa_kernarg_size 80
  .amdhsa_user_sgpr_count 2
  .amdhsa_user_sgpr_kernarg_segment_ptr 1
  .amdhsa_system_sgpr_workgroup_id_x 1
  .amdhsa_float_denorm_mode_32 3
.end_amdhsa_kernel
"""
def kernel_text(name, body, vgpr, accum, sgpr=102):
    return (f".text\n.globl {name}\n.p2align 8\n.type {name},@function\n{name}:\n" + body +
            "s_endpgm\n" + KD_TMPL.format(name=name, vgpr=vgpr, accum=accum, sgpr=sgpr))
```

```python
from common import *
def gen_k0(name='k0_kernel'):
    E = Emitter()
    E.I('s_cmp_ge_u32 s2, 996'); E.I('s_cbranch_scc1 K0_END')
    E.I('s_load_dwordx2 s[4:5], s[0:1], %d' % KA_X)
    E.I('s_load_dwordx2 s[6:7], s[0:1], %d' % KA_WS)
    E.I('s_load_dwordx2 s[20:21], s[0:1], %d' % KA_WO)
    E.I('s_load_dwordx2 s[22:23], s[0:1], %d' % KA_WD)
    E.waitcnt(lg=0)
    srd(E, 8, 4, 5, 2048*1280)
    srd(E, 12, 6, 7, WS_SIZE)
    E.I('s_cmp_ge_u32 s2, 256'); E.I('s_cbranch_scc1 K0_W3')
    E.I('v_lshrrev_b32 v1, 6, v0'); E.I('v_and_b32 v2, 63, v0')
    E.I('v_readfirstlane_b32 s16, v1')
    E.I('s_lshl_b32 s17, s2, 3'); E.I('s_lshl_b32 s18, s16, 1'); E.I('s_add_u32 s17, s17, s18')
    E.I('v_lshlrev_b32 v3, 2, v2')
    for rr in range(2):
        E.I(f's_add_u32 s18, s17, {rr}'); E.I('s_mul_i32 s19, s18, 1280')
        for i in range(5):
            E.I(f'buffer_load_dword v{10+i}, v3, s[8:11], s19 offen offset:{256*i}')
        for i in range(5):
            E.I(f'v_lshlrev_b32 v{20+2*i}, 16, v{10+i}')
            E.I(f'v_and_b32 v{21+2*i}, 0xffff0000, v{10+i}')
        E.I('v_add_f32 v4, v20, v21')
        for i in range(2, 10): E.I(f'v_add_f32 v4, v4, v{20+i}')
        wavesum(E, 4, 5)
        E.I('v_mul_f32 v4, 0x3acccccd, v4')
        for i in range(10): E.I(f'v_sub_f32 v{20+i}, v{20+i}, v4')
        E.I('v_mul_f32 v6, v20, v20')
        for i in range(1, 10): E.I(f'v_fmac_f32 v6, v{20+i}, v{20+i}')
        wavesum(E, 6, 5)
        E.I('v_mov_b32 v7, 0x3727c5ac')
        E.I('v_fmac_f32 v7, 0x3acccccd, v6')
        E.I('v_rsq_f32 v7, v7')
        for i in range(10): E.I(f'v_mul_f32 v{20+i}, v{20+i}, v7')
        for i in range(5):
            E.I(f'v_cvt_pk_bf16_f32 v{10+i}, v{20+2*i}, v{21+2*i}')
        for i in range(5):
            E.I(f'buffer_store_dword v{10+i}, v3, s[12:15], s19 offen offset:{256*i}')
        E.waitcnt(vm=0)
    E.waitcnt(vm=0)
    E.I('s_endpgm')
    E.label('K0_W3')
    E.reset_state()
    E.I('s_sub_u32 s16, s2, 256')
    E.I('s_mul_hi_u32 s17, s16, 0x1999999a')
    E.I('s_mul_i32 s18, s17, 10'); E.I('s_sub_u32 s18, s16, s18')
    E.I('s_lshl_b32 s18, s18, 8')
    E.I('v_add_u32 v1, s18, v0')
    E.I('v_lshrrev_b32 v2, 6, v1')
    E.I('v_and_b32 v3, 63, v1')
    E.I('v_and_b32 v4, 15, v3')
    E.I('v_lshl_add_u32 v4, v2, 4, v4')
    E.I('v_lshrrev_b32 v5, 4, v3')
    E.I('v_mul_u32_u24 v6, 52, v2'); E.I('v_lshrrev_b32 v6, 8, v6')
    E.I('v_mul_u32_u24 v7, 5, v6'); E.I('v_sub_u32 v7, v2, v7')
    E.I('v_mul_u32_u24 v8, 74, v6'); E.I('v_add_u32 v8, s17, v8')
    E.I('v_mul_u32_u24 v8, 5, v8'); E.I('v_add_u32 v8, v8, v7')
    E.I('v_lshlrev_b32 v8, 10, v8'); E.I('v_lshl_add_u32 v8, v3, 4, v8')
    E.I(f'v_add_u32 v8, {WS_W3}, v8')
    E.I('s_cmp_ge_u32 s17, 20'); E.I('s_cbranch_scc1 K0_WD')
    srd(E, 24, 20, 21, 640*1280)
    E.I('s_cmp_ge_u32 s17, 16'); E.I('s_cbranch_scc1 K0_WO2')
    E.I('v_lshrrev_b32 v9, 1, v5'); E.I('s_lshl_b32 s18, s17, 1'); E.I('v_add_u32 v9, s18, v9')
    E.I('v_mul_u32_u24 v9, 20, v9'); E.I('v_and_b32 v10, 1, v5'); E.I('v_lshl_add_u32 v9, v10, 2, v9')
    E.I('s_mov_b32 s19, 8')
    E.I('s_branch K0_GO')
    E.label('K0_WO2')
    E.I('s_sub_u32 s18, s17, 16'); E.I('s_lshl_b32 s18, s18, 2'); E.I('v_add_u32 v9, s18, v5')
    E.I('v_mul_u32_u24 v9, 40, v9'); E.I('v_add_u32 v9, 16, v9')
    E.I('s_mov_b32 s19, 20')
    E.I('s_branch K0_GO')
    E.label('K0_WD')
    srd(E, 24, 22, 23, 1728*1280)
    E.I('s_sub_u32 s18, s17, 20'); E.I('s_lshl_b32 s18, s18, 5')
    E.I('v_lshlrev_b32 v9, 3, v5'); E.I('v_add_u32 v9, s18, v9')
    E.I('s_mov_b32 s19, 4')
    E.label('K0_GO')
    E.reset_state()
    E.I('s_nop 4')
    E.I('v_mul_u32_u24 v9, 1280, v9'); E.I('v_lshl_add_u32 v9, v4, 1, v9')
    E.I('s_mul_i32 s19, s19, 1280')
    for j in range(4):
        E.I(f'buffer_load_ushort v{12+j}, v9, s[24:27], 0 offen offset:{1280*j}')
    for j in range(4):
        E.I(f'buffer_load_ushort v{16+j}, v9, s[24:27], s19 offen offset:{1280*j}')
    for j in range(4):
        E.I(f'v_lshl_or_b32 v{20+j}, v{13+2*j}, 16, v{12+2*j}')
    E.I('buffer_store_dwordx4 v[20:23], v8, s[12:15], 0 offen')
    E.waitcnt(vm=0)
    E.label('K0_END')
    return kernel_text(name, E.text(), 64, 64)
if __name__ == '__main__':
    print(gen_k0())
```

```python
from common import *

SLOT = 20480; NSLOT = 5
XST = SLOT * NSLOT
LDS_BYTES = XST + 4 * 3 * 4096

V_TID=0; V_LANE=1
V_TRLO=2
V_TRHI=7
V_WD=12
V_XD=17
V_XR=21
V_ST=25
V_ONE=30
V_T=32
ACC=[96, 176]
A_X=0; A_W=160
S_X=8; S_W=12; S_WS=16
S_WAVE=20; S_RB=21; S_TYPE=22; S_WOFF=23; S_XOFF=24; S_M0W=25; S_M0X=26; S_SCALE=27; S_TMP=28

PERM_QK = [[0,1,2,3,5,6,4,7],[0,1,2,3,4,5,6,7],[0,1,2,3,4,5,6,7],[1,2,3,4,0,5,6,7],[0,1,3,4,5,6,2,7]]
HEAD_SLOTS = [((0,0),(0,1)),((0,2),(1,0)),((1,1),(1,2)),((2,0),(2,1)),((2,2),(2,3)),((3,0),(3,1)),((3,3),(4,0)),((4,1),(4,2))]
SINGLE_SLOTS = [(0,3),(1,3),(3,2),(4,3)]

def common_setup(E):
    E.I(f'v_and_b32 v{V_LANE}, 63, v0')
    E.I(f'v_lshrrev_b32 v{V_T}, 6, v0')
    E.I(f'v_readfirstlane_b32 s{S_WAVE}, v{V_T}')
    E.I(f's_lshl_b32 s{S_TMP}, s{S_RB}, 7'); E.I(f's_lshl_b32 s{S_TMP+1}, s{S_WAVE}, 5')
    E.I(f's_add_u32 s{S_TMP}, s{S_TMP}, s{S_TMP+1}')
    E.I(f'v_lshrrev_b32 v{V_T}, 3, v{V_LANE}')
    E.I(f'v_add_u32 v{V_T}, s{S_TMP}, v{V_T}')
    E.I(f'v_mul_u32_u24 v{V_T}, 1280, v{V_T}')
    E.I(f'v_and_b32 v{V_T+1}, 7, v{V_LANE}')
    E.I(f'v_lshrrev_b32 v{V_T+2}, 4, v{V_LANE}')
    for i in range(4):
        E.I(f'v_add_u32 v{V_T+3}, {4*(i&1)}, v{V_T+2}')
        E.I(f'v_xor_b32 v{V_T+3}, v{V_T+1}, v{V_T+3}')
        E.I(f'v_lshl_add_u32 v{V_XD+i}, v{V_T+3}, 4, v{V_T}')
        if i: E.I(f'v_add_u32 v{V_XD+i}, {i*(8*1280-1024)}, v{V_XD+i}')
    E.I(f's_mul_i32 s{S_M0X}, s{S_WAVE}, 12288'); E.I(f's_add_u32 s{S_M0X}, s{S_M0X}, {XST}')
    E.I(f'v_and_b32 v{V_T}, 31, v{V_LANE}')
    E.I(f'v_lshrrev_b32 v{V_T+1}, 1, v{V_T}'); E.I(f'v_and_b32 v{V_T+1}, 7, v{V_T+1}')
    E.I(f'v_lshrrev_b32 v{V_T+2}, 5, v{V_LANE}')
    E.I(f'v_lshlrev_b32 v{V_T}, 7, v{V_T}'); E.I(f'v_add_u32 v{V_T}, s{S_M0X}, v{V_T}')
    for s in range(4):
        E.I(f'v_add_u32 v{V_T+3}, {2*s}, v{V_T+2}')
        E.I(f'v_xor_b32 v{V_T+3}, v{V_T+3}, v{V_T+1}')
        E.I(f'v_lshl_add_u32 v{V_XR+s}, v{V_T+3}, 4, v{V_T}')

def setup_glu(E):
    l = V_LANE; t = V_T
    E.I(f'v_bfe_u32 v{t}, v{l}, 4, 1')
    E.I(f'v_lshrrev_b32 v{t+1}, 5, v{l}')
    E.I(f'v_bfe_u32 v{t+2}, v{l}, 2, 2')
    E.I(f'v_and_b32 v{t+3}, 3, v{l}')
    E.I(f'v_lshl_add_u32 v{t+4}, v{t+1}, 3, v{t+2}')
    E.I(f'v_lshlrev_b32 v{t+4}, 7, v{t+4}')
    E.I(f'v_lshl_add_u32 v{t+4}, v{t}, 13, v{t+4}')
    E.I(f'v_and_b32 v{t+5}, 1, v{t+3}'); E.I(f'v_lshlrev_b32 v{t+5}, 1, v{t+5}')
    E.I(f'v_lshrrev_b32 v{t+6}, 1, v{t+3}'); E.I(f'v_add_u32 v{t+5}, v{t+5}, v{t+6}')
    E.I(f'v_lshl_add_u32 v{t+4}, v{t+5}, 3, v{t+4}')
    E.I(f'v_lshrrev_b32 v{t+5}, 1, v{t+2}')
    E.I(f'v_lshl_add_u32 v{t+5}, v{t}, 1, v{t+5}')
    for j in range(4):
        E.I(f'v_xor_b32 v{t+6}, {j}, v{t+5}')
        E.I(f'v_lshl_add_u32 v{V_TRLO+j}, v{t+6}, 5, v{t+4}')
        E.I(f'v_add_u32 v{V_TRHI+j}, {3*SLOT}, v{V_TRLO+j}')
    E.I(f's_and_b32 s{S_TMP}, s{S_WAVE}, 1'); E.I(f's_lshl_b32 s{S_TMP}, s{S_TMP}, 5')
    E.I(f's_lshr_b32 s{S_TMP+1}, s{S_WAVE}, 1'); E.I(f's_lshl_b32 s{S_TMP+1}, s{S_TMP+1}, 1')
    E.I(f'v_lshrrev_b32 v{t}, 3, v{l}')
    E.I(f'v_bfe_u32 v{t+1}, v{l}, 4, 1')
    E.I(f'v_or_b32 v{t+1}, s{S_TMP+1}, v{t+1}')
    E.I(f'v_bfe_u32 v{t+2}, v{l}, 1, 2')
    E.I(f'v_xor_b32 v{t+2}, v{t+2}, v{t+1}')
    E.I(f'v_lshlrev_b32 v{t+2}, 5, v{t+2}')
    E.I(f'v_and_b32 v{t+3}, 1, v{l}'); E.I(f'v_lshl_add_u32 v{t+2}, v{t+3}, 4, v{t+2}')
    E.I(f'v_add_u32 v{t}, s{S_TMP}, v{t}')
    E.I(f'v_mul_u32_u24 v{t}, 3456, v{t}')
    E.I(f'v_add_u32 v{V_WD}, v{t}, v{t+2}')
    for i in range(1, 4):
        E.I(f'v_add_u32 v{V_WD+i}, {i*(8*3456-1024)}, v{V_WD}')
    E.I(f's_lshl_b32 s{S_M0W}, s{S_WAVE}, 12')
    E.I(f's_lshl_b32 s{S_TMP}, s{S_RB}, 1'); E.I(f's_lshr_b32 s{S_TMP+1}, s{S_WAVE}, 1'); E.I(f's_add_u32 s{S_TMP}, s{S_TMP}, s{S_TMP+1}')
    E.I(f's_mul_i32 s{S_TMP}, s{S_TMP}, {NKS*4096}')
    E.I(f's_and_b32 s{S_TMP+1}, s{S_WAVE}, 1'); E.I(f's_lshl_b32 s{S_TMP+1}, s{S_TMP+1}, 11')
    E.I(f's_add_u32 s{S_TMP}, s{S_TMP}, s{S_TMP+1}'); E.I(f's_add_u32 s{S_TMP}, s{S_TMP}, {WS_ACT}')
    E.I(f'v_bfe_u32 v{t}, v{l}, 4, 1'); E.I(f'v_lshlrev_b32 v{t}, 10, v{t}')
    E.I(f'v_lshrrev_b32 v{t+1}, 5, v{l}'); E.I(f'v_lshl_add_u32 v{t}, v{t+1}, 8, v{t}')
    E.I(f'v_and_b32 v{t+1}, 15, v{l}'); E.I(f'v_lshl_add_u32 v{t}, v{t+1}, 4, v{t}')
    E.I(f'v_add_u32 v{V_ST}, s{S_TMP}, v{t}')

def setup_qkv(E, isV):
    l = V_LANE; t = V_T
    E.I(f'v_lshrrev_b32 v{t+1}, 5, v{l}')
    E.I(f'v_bfe_u32 v{t+2}, v{l}, 2, 2')
    E.I(f'v_lshl_add_u32 v{t+4}, v{t+1}, 3, v{t+2}')
    E.I(f'v_mul_u32_u24 v{t+4}, 320, v{t+4}')
    E.I(f'v_bfe_u32 v{t}, v{l}, 4, 1'); E.I(f'v_and_b32 v{t+3}, 3, v{l}')
    E.I(f'v_lshl_add_u32 v{t+3}, v{t}, 2, v{t+3}')
    E.I(f'v_lshlrev_b32 v{t+5}, 2, v{t+3}')
    for j in range(5):
        perm = list(range(8)) if isV else PERM_QK[j]
        word = sum(perm[c] << (4*c) for c in range(8))
        E.I(f's_mov_b32 s{S_TMP}, {word}')
        E.I(f'v_lshrrev_b32 v{t+6}, v{t+5}, s{S_TMP}')
        E.I(f'v_and_b32 v{t+6}, 15, v{t+6}')
        E.I(f'v_lshl_add_u32 v{t+6}, v{t+6}, 3, v{t+4}')
        E.I(f'v_add_u32 v{V_TRLO+j}, {64*j}, v{t+6}')
        E.I(f'v_add_u32 v{V_TRHI+j}, {3*SLOT}, v{V_TRLO+j}')
    E.I(f's_lshl_b32 s{S_TMP}, s{S_WAVE}, 4')
    for i in range(5):
        E.I(f'v_add_u32 v{t}, {64*i}, v{l}')
        E.I(f'v_mul_u32_u24 v{t+1}, 3277, v{t}'); E.I(f'v_lshrrev_b32 v{t+1}, 16, v{t+1}')
        E.I(f'v_mul_u32_u24 v{t+2}, 20, v{t+1}'); E.I(f'v_sub_u32 v{t+2}, v{t}, v{t+2}')
        E.I(f'v_add_u32 v{t+1}, s{S_TMP}, v{t+1}')
        E.I(f'v_mul_u32_u24 v{t+1}, 3840, v{t+1}')
        E.I(f'v_lshl_add_u32 v{V_WD+i}, v{t+2}, 4, v{t+1}')
        if 0 < i < 4: E.I(f'v_subrev_u32 v{V_WD+i}, {1024*i}, v{V_WD+i}')
    E.I(f's_mul_i32 s{S_M0W}, s{S_WAVE}, 5120')
    E.I(f's_lshl_b32 s{S_TMP}, s{S_RB}, 2'); E.I(f's_add_u32 s{S_TMP}, s{S_TMP}, s{S_WAVE}')
    if not isV:
        E.I(f's_lshl_b32 s{S_TMP+1}, s{S_TMP}, 10')
        E.I(f'v_lshlrev_b32 v{t}, 4, v{l}'); E.I(f'v_add_u32 v{V_ST}, s{S_TMP+1}, v{t}')
        E.I(f's_lshl_b32 s{S_TMP+1}, s{S_TMP}, 8')
        E.I(f'v_and_b32 v{t}, 31, v{l}'); E.I(f'v_lshlrev_b32 v{t}, 3, v{t}')
        E.I(f'v_lshrrev_b32 v{t+1}, 5, v{l}'); E.I(f'v_lshl_add_u32 v{t}, v{t+1}, 14, v{t}')
        E.I(f'v_add_u32 v{V_ST+1}, s{S_TMP+1}, v{t}')
    else:
        E.I(f's_mul_i32 s{S_TMP+1}, s{S_TMP}, {VT}')
        E.I(f'v_lshrrev_b32 v{t+3}, 5, v{l}'); E.I(f'v_mul_u32_u24 v{t+3}, 336, v{t+3}')
        E.I(f'v_add_u32 v{t+3}, s{S_TMP+1}, v{t+3}')
        E.I(f's_mov_b32 s{S_TMP+2}, {VH}')
        E.I(f'v_bfe_u32 v{t}, v{l}, 2, 3'); E.I(f'v_mul_lo_u32 v{t}, v{t}, s{S_TMP+2}')
        E.I(f'v_and_b32 v{t+1}, 3, v{l}'); E.I(f'v_mul_u32_u24 v{t+1}, 336, v{t+1}')
        E.I(f'v_add_u32 v{t}, v{t}, v{t+1}'); E.I(f'v_add_u32 v{t}, s{S_TMP+1}, v{t}')
        E.I(f'v_add_u32 v{V_ONE}, 320, v{t}')
        for i in range(4): E.I(f'v_mov_b32 v{V_T+16+i}, 0x3f803f80')
        for j in range(5):
            E.I(f'v_and_b32 v{t}, 31, v{l}'); E.I(f'v_add_u32 v{t}, {32*j}, v{t}')
            E.I(f'v_mul_u32_u24 v{t+1}, 3277, v{t}'); E.I(f'v_lshrrev_b32 v{t+1}, 16, v{t+1}')
            E.I(f'v_mul_u32_u24 v{t+2}, 20, v{t+1}'); E.I(f'v_sub_u32 v{t+2}, v{t}, v{t+2}')
            E.I(f'v_mul_lo_u32 v{t+1}, v{t+1}, s{S_TMP+2}')
            E.I(f'v_lshl_add_u32 v{t+1}, v{t+2}, 4, v{t+1}')
            E.I(f'v_add_u32 v{V_ST+j}, v{t+1}, v{t+3}')

def epi_glu(acc, soff):
    L = []
    for j in range(4):
        g = acc + 16*j; u = g + 8
        for i in range(8): L.append(f'v_mul_f32 v{g+i}, 0xbfb8aa3b, v{g+i}')
        for i in range(8): L.append(f'v_exp_f32 v{g+i}, v{g+i}')
        for i in range(8): L.append(f'v_add_f32 v{g+i}, 1.0, v{g+i}')
        for i in range(8): L.append(f'v_rcp_f32 v{g+i}, v{g+i}')
        for i in range(8): L.append(f'v_mul_f32 v{u+i}, v{u+i}, v{g+i}')
        for i in range(4): L.append(f'v_cvt_pk_bf16_f32 v{g+i}, v{u+2*i}, v{u+2*i+1}')
        L.append(f'buffer_store_dwordx4 v[{g}:{g+3}], v{V_ST}, s[{S_WS}:{S_WS+3}], s{soff + (j>>1)} offen offset:{(j&1)*512}')
    return L

def epi_qk(acc, soff1, soff2):
    L = []
    tmp = [V_T, V_T+4, V_T+8, V_T+12]
    n = 0
    def slot(ts): return acc + 16*ts[0] + 4*ts[1]
    for h in range(8):
        d = tmp[n % 4]; n += 1
        a, b = slot(HEAD_SLOTS[h][0]), slot(HEAD_SLOTS[h][1])
        L += [f'v_mul_f32 v{r}, s{S_SCALE}, v{r}' for r in list(range(a, a+4)) + list(range(b, b+4))]
        L += [f'v_cvt_pk_bf16_f32 v{d}, v{a}, v{a+1}', f'v_cvt_pk_bf16_f32 v{d+1}, v{a+2}, v{a+3}',
              f'v_cvt_pk_bf16_f32 v{d+2}, v{b}, v{b+1}', f'v_cvt_pk_bf16_f32 v{d+3}, v{b+2}, v{b+3}']
        L.append(f's_add_u32 s{S_TMP}, s{soff1}, {h*65536}')
        L.append(f'buffer_store_dwordx4 v[{d}:{d+3}], v{V_ST}, s[{S_WS}:{S_WS+3}], s{S_TMP} offen')
    for i in range(4):
        d = tmp[n % 4]; n += 1
        a = slot(SINGLE_SLOTS[i])
        L += [f'v_mul_f32 v{r}, s{S_SCALE}, v{r}' for r in range(a, a+4)]
        L += [f'v_cvt_pk_bf16_f32 v{d}, v{a}, v{a+1}', f'v_cvt_pk_bf16_f32 v{d+1}, v{a+2}, v{a+3}']
        L.append(f's_add_u32 s{S_TMP}, s{soff2}, {i*32768}')
        L.append(f'buffer_store_dwordx2 v[{d}:{d+1}], v{V_ST+1}, s[{S_WS}:{S_WS+3}], s{S_TMP} offen')
    return L

def epi_v(acc, soff):
    L = []
    tmp = [V_T, V_T+4, V_T+8, V_T+12]
    n = 0
    for j in range(5):
        for s in range(2):
            d = tmp[n % 4]; n += 1
            a = acc + 16*j + 8*s
            for i in range(4): L.append(f'v_cvt_pk_bf16_f32 v{d+i}, v{a+2*i}, v{a+2*i+1}')
            L.append(f'buffer_store_dwordx4 v[{d}:{d+3}], v{V_ST+j}, s[{S_WS}:{S_WS+3}], s{soff} offen offset:{672*s}')
    L.append(f'buffer_store_dwordx4 v[{V_T+16}:{V_T+19}], v{V_ONE}, s[{S_WS}:{S_WS+3}], s{soff} offen')
    return L

class Path:
    def __init__(self, E, kind, npanels):
        self.E = E; self.kind = kind; self.np = npanels
        self.NT = 4 if kind == 'G' else 5
        self.pitch = 128 if kind == 'G' else 320
        self.wpitch = 3456 if kind == 'G' else 3840
        self.nch = 10 * npanels
    def dma_w(self, cg):
        if cg >= self.nch: return []
        p, c = divmod(cg, 10)
        slot = cg % NSLOT
        L = []
        pb = 128 if self.kind == 'G' else 320
        L.append(('s', f's_add_u32 s{S_TMP+4}, s{S_WOFF}, {c*64*self.wpitch + p*pb}'))
        L.append(('s', f's_add_u32 m0, s{S_M0W}, {slot*SLOT}'))
        n = 4 if self.kind == 'G' else 5
        for i in range(n):
            if i == 4:
                L.append(('s', f's_add_u32 m0, s{S_M0W}, {slot*SLOT + 4096}'))
                L.append(('W', f'buffer_load_dwordx4 v{V_WD+4}, s[{S_W}:{S_W+3}], s{S_TMP+4} offen lds'))
            else:
                L.append(('W', f'buffer_load_dwordx4 v{V_WD+i}, s[{S_W}:{S_W+3}], s{S_TMP+4} offen offset:{1024*i} lds'))
        return [(k, t, cg) for k, t in L]
    def dma_x(self, c):
        if c >= 10: return []
        L = [('s', f's_add_u32 m0, s{S_M0X}, {(c%3)*4096}'), ('s', f's_mov_b32 s{S_XOFF}, {c*128}')]
        for i in range(4):
            L.append(('X', f'buffer_load_dwordx4 v{V_XD+i}, s[{S_X}:{S_X+3}], s{S_XOFF} offen offset:{1024*i} lds'))
        return [(k, t, c) for k, t in L]
    def put(self, item):
        k, t, c = item
        self.E.I(t, tag=(k, c) if k != 's' else None)
    def xread(self, c):
        for s in range(4):
            self.E.I(f'ds_read_b128 a[{A_X+16*c+4*s}:{A_X+16*c+4*s+3}], v{V_XR+s} offset:{(c%3)*4096}')
    def wread(self, cg, s, j):
        slot = cg % NSLOT
        base = (V_TRLO if slot < 3 else V_TRHI) + j
        off = (slot % 3 if slot < 3 else slot - 3) * SLOT + s * 16 * self.pitch
        par = (cg*4 + s) & 1
        d = A_W + 20*par + 4*j
        return [f'ds_read_b64_tr_b16 a[{d}:{d+1}], v{base} offset:{off}',
                f'ds_read_b64_tr_b16 a[{d+2}:{d+3}], v{base} offset:{off + 4*self.pitch}']
    def emit(self, epi_fn):
        E = self.E; NT = self.NT
        for c in range(3):
            for it in self.dma_x(c): self.put(it)
            for it in self.dma_w(c): self.put(it)
        E.wait_tag(('W', 0)); E.I('s_barrier')
        self.xread(0)
        for j in range(NT):
            for t in self.wread(0, 0, j): E.I(t)
        pending_epi = []
        for p in range(self.np):
            acc = ACC[p & 1]
            nslots = 10*4*NT
            slot_i = 0
            epi = pending_epi
            epi_start = NT + 2
            for c in range(10):
                cg = 10*p + c
                dq = []
                if p == 0: dq += self.dma_x(c + 3)
                dq += self.dma_w(cg + 3)
                for s in range(4):
                    last_step = (s == 3)
                    if last_step and cg + 1 < self.nch:
                        while dq: self.put(dq.pop(0))
                        E.wait_tag(('W', cg + 1)); E.I('s_barrier')
                        if p == 0 and c + 1 < 10: self.xread(c + 1)
                    for j in range(NT):
                        ks = 4*c + s
                        wf = A_W + 20*((cg*4 + s) & 1) + 4*j
                        xf = A_X + 4*ks
                        d = acc + 16*j
                        srcC = '0' if ks == 0 else f'v[{d}:{d+15}]'
                        if self.kind == 'V':
                            E.I(f'v_mfma_f32_32x32x16_bf16 v[{d}:{d+15}], a[{xf}:{xf+3}], a[{wf}:{wf+3}], {srcC}')
                        else:
                            E.I(f'v_mfma_f32_32x32x16_bf16 v[{d}:{d+15}], a[{wf}:{wf+3}], a[{xf}:{xf+3}], {srcC}')
                        if s < 3: nxt = (cg, s + 1)
                        else: nxt = (cg + 1, 0)
                        if nxt[0] < self.nch:
                            for t in self.wread(nxt[0], nxt[1], j): E.I(t)
                        if dq and not (s == 0 and j == 0):
                            it = dq.pop(0); self.put(it)
                            while it[0] == 's' and dq:
                                it = dq.pop(0); self.put(it)
                        if epi and slot_i >= epi_start:
                            rem = nslots - 4 - slot_i
                            k = max(1, -(-len(epi) // max(rem, 1)))
                            for _ in range(min(k, len(epi))): E.I(epi.pop(0))
                        slot_i += 1
            while epi: E.I(epi.pop(0))
            pending_epi = epi_fn(p, acc)
        for t in pending_epi: E.I(t)

def gen_k1(name='k1_kernel'):
    E = Emitter()
    E.I('s_cmp_ge_u32 s2, 256'); E.I('s_cbranch_scc1 K1_END')
    E.I(f's_load_dwordx2 s[4:5], s[0:1], {KA_WS}')
    E.I(f's_load_dwordx2 s[6:7], s[0:1], {KA_WQKV}')
    E.I(f's_load_dwordx4 s[32:35], s[0:1], {KA_WG}')
    E.I('s_and_b32 s36, s2, 7'); E.I('s_lshr_b32 s37, s2, 3')
    E.I('s_and_b32 s38, s36, 1'); E.I('s_lshl_b32 s38, s38, 3'); E.I('s_and_b32 s39, s37, 7')
    E.I(f's_add_u32 s{S_RB}, s38, s39')
    E.I('s_lshr_b32 s38, s36, 1'); E.I('s_lshl_b32 s38, s38, 2'); E.I('s_lshr_b32 s39, s37, 3')
    E.I(f's_add_u32 s{S_TYPE}, s38, s39')
    E.I(f's_cmp_eq_u32 s{S_TYPE}, 15'); E.I('s_cbranch_scc1 K1_END')
    E.waitcnt(lg=0)
    srd(E, S_WS, 4, 5, WS_SIZE)
    E.I(f's_add_u32 s40, s4, {WS_XN}'); E.I('s_addc_u32 s41, s5, 0')
    srd(E, S_X, 40, 41, 2048*1280)
    common_setup(E)
    E.I(f's_cmp_ge_u32 s{S_TYPE}, 6'); E.I('s_cbranch_scc1 K1_GLU')
    srd(E, S_W, 6, 7, 640*3840)
    E.I(f's_mul_i32 s{S_WOFF}, s{S_TYPE}, 640')
    E.I(f's_cmp_ge_u32 s{S_TYPE}, 4'); E.I('s_cbranch_scc1 K1_V')
    setup_qkv(E, False)
    E.I(f's_and_b32 s42, s{S_TYPE}, 1'); E.I('s_lshl_b32 s42, s42, 4')
    E.I(f's_cmp_lt_u32 s{S_TYPE}, 2')
    E.I(f's_mov_b32 s45, {WS_KF1}'); E.I(f's_cselect_b32 s43, {WS_QF1}, s45')
    E.I(f's_mov_b32 s45, {WS_KF2}'); E.I(f's_cselect_b32 s44, {WS_QF2}, s45')
    E.I(f's_mov_b32 s45, 1.0'); E.I(f's_cselect_b32 s{S_SCALE}, {QSCALE}, s45')
    E.I('s_lshl_b32 s45, s42, 16'); E.I('s_add_u32 s43, s43, s45')
    E.I('s_lshl_b32 s45, s42, 14'); E.I('s_add_u32 s44, s44, s45')
    E.I(f's_add_u32 s46, s43, {8*65536}'); E.I(f's_add_u32 s47, s44, {8*16384}')
    P = Path(E, 'Q', 2)
    P.emit(lambda p, acc: epi_qk(acc, 43 + 3*p, 44 + 3*p))
    E.I('s_endpgm')
    E.label('K1_V'); E.reset_state(); E.I('s_nop 4')
    setup_qkv(E, True)
    E.I(f's_and_b32 s42, s{S_TYPE}, 1'); E.I('s_lshl_b32 s42, s42, 4')
    E.I(f's_mul_i32 s43, s42, {VH}'); E.I(f's_add_u32 s43, s43, {WS_VF}')
    E.I(f's_add_u32 s44, s43, {8*VH}')
    P = Path(E, 'V', 2)
    P.emit(lambda p, acc: epi_v(acc, 43 + p))
    E.I('s_endpgm')
    E.label('K1_GLU'); E.reset_state(); E.I('s_nop 4')
    E.I(f's_cmp_lt_u32 s{S_WAVE}, 2')
    E.I('s_cselect_b32 s40, s32, s34'); E.I('s_cselect_b32 s41, s33, s35')
    srd(E, S_W, 40, 41, 640*3456)
    setup_glu(E)
    E.I(f's_sub_u32 s42, s{S_TYPE}, 6'); E.I('s_mul_i32 s42, s42, 3')
    E.I(f's_lshl_b32 s{S_WOFF}, s42, 7')
    for p in range(3):
        E.I(f's_add_u32 s45, s42, {p}'); E.I('s_lshl_b32 s45, s45, 1'); E.I('s_add_u32 s45, s45, 20')
        E.I(f's_lshl_b32 s{46+2*p}, s45, 12'); E.I(f's_add_u32 s{47+2*p}, s{46+2*p}, 4096')
    P = Path(E, 'G', 3)
    P.emit(lambda p, acc: epi_glu(acc, 46 + 2*p))
    E.label('K1_END')
    print('k1 nops', E.nops, E.count, file=__import__('sys').stderr)
    from collections import Counter
    print(Counter(w.split('@')[0] for n, w in E.nop_log).most_common(8), file=__import__('sys').stderr)
    return kernel_text(name, E.text(), 512, 256)
if __name__ == '__main__':
    print(gen_k1())
```

```python
from common import *

V_Q1=4; V_Q2=8
V_K1=10; V_K2=46
V_V=64
V_SA=136; V_SB=152; V_SC=168
V_MG=184; V_O=200; V_P=216
V_T=232
V_AK1=1; V_AK2=2; V_AV=3
S_WS=8; S_HEAD=12; S_QB=13; S_K1=14; S_K2=15; S_VB=16; S_T=20; S_MASK=40

def mask_const(i):
    m = 0
    for l in range(64):
        b = 8*(i >> 2) + 4*(l >> 5) + (i & 3)
        if b > (l & 31): m |= 1 << l
    return m

def S_mfma(E, t, dst, C):
    E.I(f'v_mfma_f32_32x32x16_bf16 v[{dst}:{dst+15}], v[{V_K1+4*t}:{V_K1+4*t+3}], v[{V_Q1}:{V_Q1+3}], {C}')
    E.I(f'v_mfma_f32_32x32x8_bf16 v[{dst}:{dst+15}], v[{V_K2+2*t}:{V_K2+2*t+1}], v[{V_Q2}:{V_Q2+1}], v[{dst}:{dst+15}]')

def maxes(E, src, first=False):
    m0, m1 = V_T, V_T+1
    if first:
        E.I(f'v_max_f32 v{m0}, v{src}, v{src+1}'); E.I(f'v_max_f32 v{m1}, v{src+2}, v{src+3}')
        st = 4
    else: st = 0
    for k, i in enumerate(range(st, 16, 2)):
        m = m0 if k % 2 == 0 else m1
        E.I(f'v_max3_f32 v{m}, v{src+i}, v{src+i+1}, v{m}')

def PV(E, t, P, first=False):
    for s in range(2):
        v = V_V + 8*t + 4*s
        C = '0' if (first and s == 0) else f'v[{V_O}:{V_O+15}]'
        E.I(f'v_mfma_f32_32x32x16_bf16 v[{V_O}:{V_O+15}], v[{v}:{v+3}], v[{P+4*s}:{P+4*s+3}], {C}')

def exps(E, S):
    for i in range(16): E.I(f'v_exp_f32 v{S+i}, v{S+i}')
def cvts(E, S, P):
    for i in range(8): E.I(f'v_cvt_pk_bf16_f32 v{P+i}, v{S+2*i}, v{S+2*i+1}')

def finish_max(E):
    m0, m1 = V_T, V_T+1
    E.I(f'v_max_f32 v{m0}, v{m0}, v{m1}')
    E.I(f'v_mov_b32 v{m1}, v{m0}')
    E.I(f'v_permlane32_swap_b32 v{m0}, v{m1}')
    E.I(f'v_max_f32 v{m0}, v{m0}, v{m1}')
    for i in range(16): E.I(f'v_sub_f32 v{V_SC+i}, 0, v{m0}')

def epilogue(E):
    t = V_T + 2
    E.I(f'v_mov_b32 v{t}, v{V_O+8}')
    E.I(f'v_mov_b32 v{t+1}, v{V_O+8}')
    E.I(f'v_permlane32_swap_b32 v{t}, v{t+1}')
    E.I(f'v_rcp_f32 v{t}, v{t+1}')
    for i in range(12): E.I(f'v_mul_f32 v{V_O+i}, v{V_O+i}, v{t}')
    for i in range(6): E.I(f'v_cvt_pk_bf16_f32 v{V_P+i}, v{V_O+2*i}, v{V_O+2*i+1}')
    l = V_T + 6
    E.I(f'v_and_b32 v{l}, 63, v0')
    E.I(f'v_bfe_u32 v{l+1}, v{l}, 4, 1'); E.I(f'v_lshlrev_b32 v{l+1}, 10, v{l+1}')
    E.I(f'v_and_b32 v{l+2}, 15, v{l}'); E.I(f'v_lshl_add_u32 v{l+1}, v{l+2}, 4, v{l+1}')
    E.I(f'v_lshrrev_b32 v{l+2}, 5, v{l}')
    E.I(f'v_lshl_add_u32 v{l+3}, v{l+2}, 8, v{l+1}')
    E.I(f'v_lshl_or_b32 v{l+1}, v{l+2}, 31, v{l+1}')
    E.I(f's_lshr_b32 s{S_T}, s{S_QB}, 1'); E.I(f's_mul_i32 s{S_T}, s{S_T}, {NKS*4096}')
    E.I(f's_and_b32 s{S_T+1}, s{S_QB}, 1'); E.I(f's_lshl_b32 s{S_T+1}, s{S_T+1}, 11')
    E.I(f's_add_u32 s{S_T}, s{S_T}, s{S_T+1}'); E.I(f's_add_u32 s{S_T}, s{S_T}, {WS_ACT}')
    E.I(f's_lshr_b32 s{S_T+1}, s{S_HEAD}, 1')
    E.I(f's_and_b32 s{S_T+2}, s{S_HEAD}, 1')
    E.I(f's_lshl_b32 s{S_T+3}, s{S_T+1}, 12'); E.I(f's_lshl_b32 s{S_T+4}, s{S_T+2}, 9')
    E.I(f's_add_u32 s{S_T+3}, s{S_T+3}, s{S_T+4}'); E.I(f's_add_u32 s{S_T+3}, s{S_T+3}, s{S_T}')
    E.I(f'buffer_store_dwordx4 v[{V_P}:{V_P+3}], v{l+3}, s[{S_WS}:{S_WS+3}], s{S_T+3} offen')
    E.I(f's_lshr_b32 s{S_T+4}, s{S_T+1}, 2'); E.I(f's_add_u32 s{S_T+4}, s{S_T+4}, 16'); E.I(f's_lshl_b32 s{S_T+4}, s{S_T+4}, 12')
    E.I(f's_and_b32 s{S_T+5}, s{S_T+1}, 3'); E.I(f's_lshl_b32 s{S_T+5}, s{S_T+5}, 8')
    E.I(f's_lshl_b32 s{S_T+6}, s{S_T+2}, 3')
    E.I(f's_add_u32 s{S_T+4}, s{S_T+4}, s{S_T+5}'); E.I(f's_add_u32 s{S_T+4}, s{S_T+4}, s{S_T+6}')
    E.I(f's_add_u32 s{S_T+4}, s{S_T+4}, s{S_T}')
    E.I(f'buffer_store_dwordx2 v[{V_P+4}:{V_P+5}], v{l+1}, s[{S_WS}:{S_WS+3}], s{S_T+4} offen')

def gen_k2(name='k2_kernel'):
    E = Emitter()
    E.I('s_cmp_ge_u32 s2, 256'); E.I('s_cbranch_scc1 K2_END'); ts_begin(E)
    E.I(f's_load_dwordx2 s[4:5], s[0:1], {KA_WS}')
    E.I(f'v_lshrrev_b32 v{V_T}, 6, v0')
    E.I(f'v_readfirstlane_b32 s6, v{V_T}')
    E.I('s_and_b32 s3, s2, 7'); E.I('s_lshr_b32 s7, s2, 3')
    E.I(f's_lshr_b32 s{S_HEAD}, s7, 3'); E.I('s_lshl_b32 s3, s3, 2'); E.I(f's_add_u32 s{S_HEAD}, s{S_HEAD}, s3')
    E.I(f's_and_b32 s7, s7, 7'); E.I('s_lshl_b32 s7, s7, 3'); E.I(f's_add_u32 s{S_QB}, s7, s6')
    l = V_T + 1
    E.I(f'v_and_b32 v{l}, 63, v0')
    E.I(f'v_lshlrev_b32 v{V_AK1}, 4, v{l}')
    E.I(f'v_and_b32 v{l+1}, 31, v{l}'); E.I(f'v_lshrrev_b32 v{l+2}, 5, v{l}')
    E.I(f'v_lshlrev_b32 v{V_AK2}, 3, v{l+1}'); E.I(f'v_lshl_or_b32 v{V_AK2}, v{l+2}, 31, v{V_AK2}')
    E.I(f'v_mul_u32_u24 v{V_AV}, 336, v{l+2}'); E.I(f'v_lshl_add_u32 v{V_AV}, v{l+1}, 4, v{V_AV}')
    E.I(f'v_cmp_lt_u32 vcc, 20, v{l+1}')
    E.I(f'v_mov_b32 v{l+3}, {OOB}')
    E.I(f'v_cndmask_b32 v{V_AV}, v{V_AV}, v{l+3}, vcc')
    E.waitcnt(lg=0)
    srd(E, S_WS, 4, 5, WS_SIZE)
    W = f's[{S_WS}:{S_WS+3}]'
    E.I(f's_lshl_b32 s{S_T}, s{S_HEAD}, 16'); E.I(f's_lshl_b32 s{S_T+1}, s{S_QB}, 10'); E.I(f's_add_u32 s{S_T+1}, s{S_T+1}, s{S_T}')
    E.I(f's_add_u32 s{S_T+1}, s{S_T+1}, {WS_QF1}')
    E.I(f'buffer_load_dwordx4 v[{V_Q1}:{V_Q1+3}], v{V_AK1}, {W}, s{S_T+1} offen')
    E.I(f's_add_u32 s{S_K1}, s{S_T}, {WS_KF1}')
    E.I(f's_lshl_b32 s{S_T}, s{S_HEAD}, 14'); E.I(f's_lshl_b32 s{S_T+1}, s{S_QB}, 8'); E.I(f's_add_u32 s{S_T+1}, s{S_T+1}, s{S_T}')
    E.I(f's_add_u32 s{S_T+1}, s{S_T+1}, {WS_QF2}')
    E.I(f'buffer_load_dwordx2 v[{V_Q2}:{V_Q2+1}], v{V_AK2}, {W}, s{S_T+1} offen')
    E.I(f's_add_u32 s{S_K2}, s{S_T}, {WS_KF2}')
    E.I(f's_mul_i32 s{S_VB}, s{S_HEAD}, {VH}'); E.I(f's_add_u32 s{S_VB}, s{S_VB}, {WS_VF}')
    order = [8, 0, 1, 2, 3, 4, 5, 6, 7]
    for t in order:
        E.I(f's_add_i32 s{S_T}, s{S_QB}, {t-8}'); E.I(f's_max_i32 s{S_T}, s{S_T}, 0')
        E.I(f's_lshl_b32 s{S_T+1}, s{S_T}, 10'); E.I(f's_add_u32 s{S_T+1}, s{S_T+1}, s{S_K1}')
        E.I(f'buffer_load_dwordx4 v[{V_K1+4*t}:{V_K1+4*t+3}], v{V_AK1}, {W}, s{S_T+1} offen')
        E.I(f's_lshl_b32 s{S_T+2}, s{S_T}, 8'); E.I(f's_add_u32 s{S_T+2}, s{S_T+2}, s{S_K2}')
        E.I(f'buffer_load_dwordx2 v[{V_K2+2*t}:{V_K2+2*t+1}], v{V_AK2}, {W}, s{S_T+2} offen')
    for t in [0, 8, 1, 2, 3, 4, 5, 6, 7]:
        E.I(f's_add_i32 s{S_T}, s{S_QB}, {t-8}'); E.I(f's_max_i32 s{S_T}, s{S_T}, 0')
        E.I(f's_mul_i32 s{S_T+1}, s{S_T}, {VT}'); E.I(f's_add_u32 s{S_T+1}, s{S_T+1}, s{S_VB}')
        for s in range(2):
            v = V_V + 8*t + 4*s
            E.I(f'buffer_load_dwordx4 v[{v}:{v+3}], v{V_AV}, {W}, s{S_T+1} offen offset:{672*s}')
    for i in range(16):
        m = mask_const(i)
        E.I(f's_mov_b32 s{S_MASK+2*i}, {m & 0xffffffff:#x}'); E.I(f's_mov_b32 s{S_MASK+2*i+1}, {m >> 32:#x}')
    E.I(f's_cmp_lt_u32 s{S_QB}, 8'); E.I('s_cbranch_scc1 K2_SLOW')
    import copy
    snap = copy.deepcopy((E.vm, E.lg, E.sm, E.last, E.pos))
    S_mfma(E, 8, V_SA, '0'); S_mfma(E, 0, V_SB, '0'); S_mfma(E, 1, V_SC, '0')
    for i in range(16):
        E.I(f'v_cndmask_b32 v{V_MG+i}, v{V_SA+i}, v{V_SB+i}, s[{S_MASK+2*i}:{S_MASK+2*i+1}]')
    S_mfma(E, 2, V_SA, '0')
    maxes(E, V_MG, first=True)
    bufs = [V_SC, V_SA, V_SB]
    for t in range(1, 8):
        if t + 2 <= 7: S_mfma(E, t + 2, bufs[(t + 1) % 3], '0')
        maxes(E, bufs[(t - 1) % 3])
    finish_max(E)
    NEG = f'v[{V_SC}:{V_SC+15}]'
    S_mfma(E, 1, V_SA, NEG); S_mfma(E, 2, V_SB, NEG)
    for i in range(16): E.I(f'v_add_f32 v{V_MG+i}, v{V_MG+i}, v{V_SC+i}')
    exps(E, V_MG)
    P0, P1 = V_P, V_P + 8
    for i in range(0, 16, 2):
        a, b = V_T + 2, V_T + 3
        E.I(f'v_cndmask_b32 v{a}, 0, v{V_MG+i}, s[{S_MASK+2*i}:{S_MASK+2*i+1}]')
        E.I(f'v_cndmask_b32 v{b}, 0, v{V_MG+i+1}, s[{S_MASK+2*i+2}:{S_MASK+2*i+3}]')
        E.I(f'v_sub_f32 v{V_MG+i}, v{V_MG+i}, v{a}')
        E.I(f'v_sub_f32 v{V_MG+i+1}, v{V_MG+i+1}, v{b}')
        E.I(f'v_cvt_pk_bf16_f32 v{P0+i//2}, v{a}, v{b}')
        E.I(f'v_cvt_pk_bf16_f32 v{P1+i//2}, v{V_MG+i}, v{V_MG+i+1}')
    PV(E, 0, P0, first=True); PV(E, 8, P1)
    sb = [V_SA, V_SB]; pb = [V_P, V_P + 8]
    for t in range(1, 8):
        S = sb[(t - 1) % 2]; P = pb[(t - 1) % 2]
        exps(E, S); cvts(E, S, P)
        if t + 2 <= 7: S_mfma(E, t + 2, S, NEG)
        PV(E, t, P)
    epilogue(E)
    ts_end(E, 2, 4, 5)
    E.I('s_endpgm')
    E.label('K2_SLOW')
    E.vm, E.lg, E.sm, E.last, E.pos = snap
    E.last = {}; E.lastC = {}; E.laststore = {}
    E.waitcnt(vm=0)
    S_mfma(E, 8, V_SA, '0')
    E.I(f'v_mov_b32 v{V_T+2}, 0xf149f2ca')
    for i in range(16):
        E.I(f'v_cndmask_b32 v{V_MG+i}, v{V_SA+i}, v{V_T+2}, s[{S_MASK+2*i}:{S_MASK+2*i+1}]')
    maxes(E, V_MG, first=True)
    E.fence()
    for t in range(1, 8):
        E.I(f's_cmp_lt_u32 s{S_QB}, {8-t}'); E.I(f's_cbranch_scc1 K2_S1_{t}')
        S_mfma(E, t, V_SA, '0'); maxes(E, V_SA)
        E.fence()
        E.label(f'K2_S1_{t}')
    finish_max(E)
    for i in range(16): E.I(f'v_add_f32 v{V_MG+i}, v{V_MG+i}, v{V_SC+i}')
    exps(E, V_MG); cvts(E, V_MG, V_P)
    PV(E, 8, V_P, first=True)
    E.fence()
    for t in range(1, 8):
        E.I(f's_cmp_lt_u32 s{S_QB}, {8-t}'); E.I(f's_cbranch_scc1 K2_S2_{t}')
        S_mfma(E, t, V_SA, NEG); exps(E, V_SA); cvts(E, V_SA, V_P); PV(E, t, V_P)
        E.fence()
        E.label(f'K2_S2_{t}')
    epilogue(E)
    ts_end(E, 2, 4, 5)
    E.label('K2_END')
    print('k2 nops', E.nops, E.count, file=__import__('sys').stderr)
    return kernel_text(name, E.text(), 256, 256)
if __name__ == '__main__':
    print(gen_k2())
```

```python
from common import *
DEPTH = 4
V_B=8
V_ACC = V_B + DEPTH*36
V_X = V_ACC + 80
V_T = V_X + 12
V_A=1; V_A2=2; V_L=3; V_L2=4; V_O=5
S_WS=8; S_X=12; S_OUT=16; S_W=20; S_SA=21; S_SW=22; S_T=24
PITCH=336; PART=64*PITCH
LDS_BYTES = 4*PART + 2048
NST = 19

def gen_k3(name):
    E = Emitter()
    E.I('s_cmp_ge_u32 s2, 256'); E.I('s_cbranch_scc1 K3_END'); ts_begin(E)
    E.I(f's_load_dwordx2 s[4:5], s[0:1], {KA_WS}')
    E.I(f's_load_dwordx2 s[6:7], s[0:1], {KA_X}')
    E.I(f's_load_dwordx2 s[34:35], s[0:1], {KA_OUT}')
    l = V_T
    E.I(f'v_lshrrev_b32 v{l}, 6, v0'); E.I(f'v_readfirstlane_b32 s{S_W}, v{l}')
    E.I(f'v_and_b32 v{l}, 63, v0')
    E.I(f'v_lshlrev_b32 v{V_A}, 4, v{l}'); E.I(f'v_add_u32 v{V_A2}, 4096, v{V_A}')
    E.I('s_and_b32 s30, s2, 7'); E.I('s_lshr_b32 s31, s2, 3')
    E.I('s_and_b32 s32, s30, 3'); E.I('s_lshl_b32 s32, s32, 3'); E.I('s_and_b32 s33, s31, 7'); E.I('s_add_u32 s28, s32, s33')
    E.I('s_lshr_b32 s32, s30, 2'); E.I('s_lshl_b32 s32, s32, 2'); E.I('s_lshr_b32 s33, s31, 3'); E.I('s_add_u32 s29, s32, s33')
    E.I(f's_mul_i32 s30, s{S_W}, 19'); E.I(f's_cmp_eq_u32 s{S_W}, 3'); E.I('s_cselect_b32 s31, 1, 0'); E.I('s_sub_u32 s30, s30, s31')
    E.I(f's_mul_i32 s{S_SA}, s28, {NKS}'); E.I(f's_add_u32 s{S_SA}, s{S_SA}, s30'); E.I(f's_lshl_b32 s{S_SA}, s{S_SA}, 12')
    E.I(f's_add_u32 s{S_SA}, s{S_SA}, {WS_ACT}')
    E.I(f's_mul_i32 s{S_SW}, s29, {NKS}'); E.I(f's_add_u32 s{S_SW}, s{S_SW}, s30'); E.I(f's_mul_i32 s{S_SW}, s{S_SW}, 5120')
    E.I(f's_add_u32 s{S_SW}, s{S_SW}, {WS_W3}')
    E.I(f's_cmp_lt_u32 s{S_W}, 2'); E.I(f's_cselect_b32 s31, 0, {OOB}')
    E.I(f'v_or_b32 v{V_L}, s31, v{V_A}'); E.I(f'v_or_b32 v{V_L2}, s31, v{V_A2}')
    E.waitcnt(lg=0)
    srd(E, S_WS, 4, 5, WS_SIZE); srd(E, S_X, 6, 7, 2048*1280); srd(E, S_OUT, 34, 35, 2048*1280)
    W = f's[{S_WS}:{S_WS+3}]'
    def loads(st):
        b = V_B + 36*(st % DEPTH)
        va, va2 = (V_A, V_A2) if st < NST-1 else (V_L, V_L2)
        L = [f's_add_u32 s{S_T}, s{S_SA}, {st*4096}', f's_add_u32 s{S_T+1}, s{S_SW}, {st*5120}']
        for i in range(5):
            if i < 4:
                L.append(f'buffer_load_dwordx4 v[{b+16+4*i}:{b+19+4*i}], v{va}, {W}, s{S_T+1} offen offset:{1024*i}')
                L.append(f'buffer_load_dwordx4 v[{b+4*i}:{b+4*i+3}], v{va}, {W}, s{S_T} offen offset:{1024*i}')
            else:
                L.append(f'buffer_load_dwordx4 v[{b+32}:{b+35}], v{va2}, {W}, s{S_T+1} offen')
        return L
    for st in range(DEPTH - 1):
        for t in loads(st): E.I(t)
    E.I(f's_lshl_b32 s30, s28, 6'); E.I(f's_lshl_b32 s31, s{S_W}, 4'); E.I('s_add_u32 s30, s30, s31')
    E.I('s_mul_i32 s30, s30, 1280'); E.I('s_mul_i32 s31, s29, 160'); E.I('s_add_u32 s30, s30, s31')
    V_R = V_T + 1
    t = V_T + 4
    E.I(f's_mul_i32 s31, s{S_W}, {16*PITCH}')
    for r in range(3):
        E.I(f'v_add_u32 v{t}, {64*r}, v{l}')
        E.I(f'v_mul_u32_u24 v{t+1}, 6554, v{t}'); E.I(f'v_lshrrev_b32 v{t+1}, 16, v{t+1}')
        E.I(f'v_mul_u32_u24 v{t+2}, 10, v{t+1}'); E.I(f'v_sub_u32 v{t+2}, v{t}, v{t+2}')
        E.I(f'v_mul_u32_u24 v{t+3}, 1280, v{t+1}'); E.I(f'v_lshl_add_u32 v{t+3}, v{t+2}, 4, v{t+3}')
        E.I(f'v_add_u32 v{V_O+r}, s30, v{t+3}')
        if r == 2:
            E.I(f'v_cmp_lt_u32 vcc, 31, v{l}'); E.I(f'v_mov_b32 v{t+3}, {OOB}')
            E.I(f'v_cndmask_b32 v{V_O+r}, v{V_O+r}, v{t+3}, vcc')
        E.I(f'v_mul_u32_u24 v{t+3}, {PITCH}, v{t+1}'); E.I(f'v_lshl_add_u32 v{t+3}, v{t+2}, 5, v{t+3}')
        E.I(f'v_add_u32 v{V_R+r}, s31, v{t+3}')
    for r in range(3):
        E.I(f'buffer_load_dwordx4 v[{V_X+4*r}:{V_X+4*r+3}], v{V_O+r}, s[{S_X}:{S_X+3}], 0 offen')
    V_WA = V_T + 8
    E.I(f's_mul_i32 s31, s{S_W}, {PART}')
    E.I(f'v_and_b32 v{t}, 15, v{l}'); E.I(f'v_mul_u32_u24 v{t}, {PITCH}, v{t}')
    E.I(f'v_lshrrev_b32 v{t+1}, 4, v{l}'); E.I(f'v_lshl_add_u32 v{t}, v{t+1}, 4, v{t}')
    E.I(f'v_add_u32 v{V_WA}, s31, v{t}')
    for st in range(NST):
        b = V_B + 36*(st % DEPTH)
        nxt = loads(st + DEPTH - 1) if st + DEPTH - 1 < NST else []
        k = 0
        for nt in range(5):
            for tt in range(4):
                d = V_ACC + 4*(nt*4 + tt)
                C = '0' if st == 0 else f'v[{d}:{d+3}]'
                E.I(f'v_mfma_f32_16x16x32_bf16 v[{d}:{d+3}], v[{b+16+4*nt}:{b+19+4*nt}], v[{b+4*tt}:{b+4*tt+3}], {C}')
                k += 1
                if k == 1:
                    pass
                if nxt and k >= 1 and k % 2 == 1:
                    x = nxt.pop(0); E.I(x)
                    while x.startswith('s_') and nxt:
                        x = nxt.pop(0); E.I(x)
        while nxt: E.I(nxt.pop(0))
    for nt in range(5):
        for tt in range(4):
            d = V_ACC + 4*(nt*4 + tt)
            E.I(f'ds_write_b128 v{V_WA}, v[{d}:{d+3}] offset:{tt*16*PITCH + nt*64}')
    E.waitcnt(lg=0); E.I('s_barrier')
    R = V_B
    for r in range(3):
        for pw in range(4):
            for h in range(2):
                q = R + 32*r + 8*pw + 4*h
                E.I(f'ds_read_b128 v[{q}:{q+3}], v{V_R+r} offset:{pw*PART + 16*h}')
    for r in range(3):
        q = R + 32*r
        for i in range(8):
            E.I(f'v_add_f32 v{q+i}, v{q+i}, v{q+8+i}')
            E.I(f'v_add_f32 v{q+16+i}, v{q+16+i}, v{q+24+i}')
        for i in range(4):
            E.I(f'v_lshlrev_b32 v{q+8+2*i}, 16, v{V_X+4*r+i}')
            E.I(f'v_and_b32 v{q+9+2*i}, 0xffff0000, v{V_X+4*r+i}')
        for i in range(8):
            E.I(f'v_add_f32 v{q+i}, v{q+i}, v{q+16+i}')
            E.I(f'v_add_f32 v{q+i}, v{q+i}, v{q+8+i}')
        for i in range(4):
            E.I(f'v_cvt_pk_bf16_f32 v{q+8+i}, v{q+2*i}, v{q+2*i+1}')
        E.I(f'buffer_store_dwordx4 v[{q+8}:{q+11}], v{V_O+r}, s[{S_OUT}:{S_OUT+3}], 0 offen')
    ts_end(E, 3, 4, 5)
    E.label('K3_END')
    print('k3 nops', E.nops, E.count, file=__import__('sys').stderr)
    nv = V_T + 16
    return kernel_text(name, E.text(), 512, 256) if nv > 256 else kernel_text(name, E.text(), 256, 256)
if __name__ == '__main__':
    print(gen_k3('k3_kernel'))
```

```python
import sys, importlib
from common import *
import k0, k1, k2, k3, k23, k23b
MAIN = 'parallel_sum__sliding_block__glu_gated_glu__prompt_kernel'
HDR = open('parallel_sum__sliding_block__glu_gated_glu__prompt.s.ref').read().split('\n')
hdr = [l for l in HDR[:11]]
def build(launches, kernels):
    out = list(hdr)
    for (k, g, b, lds) in launches:
        out.append(f'; @launch kernel={k} grid=({g},1,1) block=({b},1,1) lds={lds}')
    out.append('.amdgcn_target "amdgcn-amd-amdhsa--gfx950"')
    return '\n'.join(out) + '\n' + '\n'.join(kernels)
if __name__ == '__main__':
    dst = sys.argv[1] if len(sys.argv) > 1 else 'parallel_sum__sliding_block__glu_gated_glu__prompt.s'
    ks = [k0.gen_k0('k0_kernel'), k1.gen_k1('k1_kernel'), k23b.gen_k23b(MAIN)]
    L = [('k0_kernel', 996, 256, 0), ('k1_kernel', 256, 256, k1.LDS_BYTES), (MAIN, 256, 512, k23b.LDS_BYTES)]
    s = build(L, ks)
    open(dst, 'w').write(s)
    print('size', len(s))
```

```python
from emit import *
WS_XN  = 0x0000000
WS_QF1 = 0x0400000
WS_QF2 = 0x0600000
WS_KF1 = 0x0800000
WS_KF2 = 0x0A00000
WS_VF  = 0x0C00000
WS_ACT = 0x1000000
WS_W3  = 0x1A00000
WS_FLG = 0x1E00000
WS_SIZE = 0x2000000
NKS = 74
VT = 1344
VH = 64*VT
QSCALE = 0x3ea52a10
import struct, math
QSCALE = struct.unpack('<I', struct.pack('<f', 20**-0.5*math.log2(math.e)))[0]
OOB = 0x80000000
KA_X, KA_WQKV, KA_WO, KA_BX, KA_WG, KA_WU, KA_WD, KA_OUT, KA_DBG, KA_WS = [8*i for i in range(10)]

def srd(E, d, lo, hi, nbytes):
    E.I(f's_mov_b32 s{d}, s{lo}')
    E.I(f's_and_b32 s{d+1}, s{hi}, 0xffff')
    E.I(f's_mov_b32 s{d+2}, {nbytes}')
    E.I(f's_mov_b32 s{d+3}, 0x20000')

def halfsum(E, v, tmp):
    E.I(f'v_mov_b32 v{tmp}, v{v}')
    E.I(f'v_permlane32_swap_b32 v{v}, v{tmp}')
    E.I(f'v_add_f32 v{v}, v{v}, v{tmp}')

def wavesum(E, v, tmp):
    for m in (1, 2, 4, 8, 16):
        E.I(f'ds_swizzle_b32 v{tmp}, v{v} offset:{(m << 10) | 0x1f}')
        E.I(f'v_add_f32 v{v}, v{v}, v{tmp}')
    halfsum(E, v, tmp)

import os
TS_ON = os.environ.get('TS') == '1'
WS_TS = 0x1F00000
def ts_begin(E, base=64, n=12):
    E.ts_base = base; E.ts_n = n
    if TS_ON:
        E.raw('s_memrealtime s[96:97]')
        E.raw(f's_memtime s[{base}:{base+1}]')
        E.nstamp = 1
def stamp(E):
    if TS_ON and E.nstamp < E.ts_n - 2:
        b = E.ts_base + 2*E.nstamp
        E.raw(f's_memtime s[{b}:{b+1}]'); E.nstamp += 1
def ts_end(E, kid, ws_lo=0, ws_hi=0):
    if not TS_ON or kid == 0: return
    b, n = E.ts_base, E.ts_n
    E.raw(f's_memtime s[{b+2*(n-2)}:{b+2*(n-2)+1}]')
    E.raw('s_waitcnt vmcnt(0) lgkmcnt(0)')
    E.raw(f's_memtime s[{b+2*(n-1)}:{b+2*(n-1)+1}]')
    E.raw('s_memrealtime s[98:99]')
    E.raw('s_waitcnt lgkmcnt(0)')
    E.raw('s_nop 7')
    E.raw('v_mov_b32 v2, s96\nv_mov_b32 v3, s97\nv_mov_b32 v4, s98\nv_mov_b32 v5, s99')
    for i in range(12):
        j = i if i < n - 2 else (None if i < 10 else i - 12 + n)
        if i < n - 2 or i >= 10: E.raw(f'v_mov_b32 v{8+i}, s{b+2*j}')
        else: E.raw(f'v_mov_b32 v{8+i}, 0')
    E.raw(f's_load_dwordx2 s[88:89], s[0:1], {KA_WS}')
    E.raw('s_waitcnt lgkmcnt(0)')
    E.raw('s_mov_b32 s92, s88\ns_and_b32 s93, s89, 0xffff\ns_mov_b32 s94, 0x2000000\ns_mov_b32 s95, 0x20000')
    E.raw('v_lshrrev_b32 v1, 6, v0\nv_lshlrev_b32 v1, 7, v1')
    E.raw(f's_lshl_b32 s90, s2, 10\ns_add_u32 s90, s90, {WS_TS + kid*0x40000}')
    E.raw('s_nop 4')
    E.raw('buffer_store_dwordx4 v[2:5], v1, s[92:95], s90 offen')
    for g in range(3):
        E.raw(f'buffer_store_dwordx4 v[{8+4*g}:{11+4*g}], v1, s[92:95], s90 offen offset:{16+16*g}')
    E.raw('s_waitcnt vmcnt(0)')
```

```python
from common import *
def gen_k0(name='k0_kernel'):
    E = Emitter()
    E.I('s_cmp_ge_u32 s2, 996'); E.I('s_cbranch_scc1 K0_END'); ts_begin(E)
    E.I('s_load_dwordx2 s[4:5], s[0:1], %d' % KA_X)
    E.I('s_load_dwordx2 s[6:7], s[0:1], %d' % KA_WS)
    E.I('s_load_dwordx2 s[20:21], s[0:1], %d' % KA_WO)
    E.I('s_load_dwordx2 s[22:23], s[0:1], %d' % KA_WD)
    E.waitcnt(lg=0)
    srd(E, 8, 4, 5, 2048*1280)
    srd(E, 12, 6, 7, WS_SIZE)
    E.I('s_cmp_ge_u32 s2, 256'); E.I('s_cbranch_scc1 K0_W3')
    E.I('s_cmp_lg_u32 s2, 0'); E.I('s_cbranch_scc1 K0_LN')
    E.I('v_lshlrev_b32 v1, 4, v0'); E.I(f'v_add_u32 v1, {WS_FLG}, v1')
    for i in range(4): E.I(f'v_mov_b32 v{10+i}, 0')
    E.I('buffer_store_dwordx4 v[10:13], v1, s[12:15], 0 offen')
    E.label('K0_LN')
    E.I('v_lshrrev_b32 v1, 6, v0'); E.I('v_and_b32 v2, 63, v0')
    E.I('v_readfirstlane_b32 s16, v1')
    E.I('s_lshl_b32 s17, s2, 3'); E.I('s_lshl_b32 s18, s16, 1'); E.I('s_add_u32 s17, s17, s18')
    E.I('v_lshlrev_b32 v3, 2, v2')
    for rr in range(2):
        E.I(f's_add_u32 s18, s17, {rr}'); E.I('s_mul_i32 s19, s18, 1280')
        for i in range(5):
            E.I(f'buffer_load_dword v{10+i}, v3, s[8:11], s19 offen offset:{256*i}')
        for i in range(5):
            E.I(f'v_lshlrev_b32 v{20+2*i}, 16, v{10+i}')
            E.I(f'v_and_b32 v{21+2*i}, 0xffff0000, v{10+i}')
        E.I('v_add_f32 v4, v20, v21')
        for i in range(2, 10): E.I(f'v_add_f32 v4, v4, v{20+i}')
        wavesum(E, 4, 5)
        E.I('v_mul_f32 v4, 0x3acccccd, v4')
        for i in range(10): E.I(f'v_sub_f32 v{20+i}, v{20+i}, v4')
        E.I('v_mul_f32 v6, v20, v20')
        for i in range(1, 10): E.I(f'v_fmac_f32 v6, v{20+i}, v{20+i}')
        wavesum(E, 6, 5)
        E.I('v_mov_b32 v7, 0x3727c5ac')
        E.I('v_fmac_f32 v7, 0x3acccccd, v6')
        E.I('v_rsq_f32 v7, v7')
        for i in range(10): E.I(f'v_mul_f32 v{20+i}, v{20+i}, v7')
        for i in range(5):
            E.I(f'v_cvt_pk_bf16_f32 v{10+i}, v{20+2*i}, v{21+2*i}')
        for i in range(5):
            E.I(f'buffer_store_dword v{10+i}, v3, s[12:15], s19 offen offset:{256*i}')
        E.waitcnt(vm=0)
    E.waitcnt(vm=0)
    ts_end(E, 0, 6, 7)
    E.I('s_endpgm')
    E.label('K0_W3')
    E.reset_state()
    E.I('s_sub_u32 s16, s2, 256')
    E.I('s_mul_hi_u32 s17, s16, 0x1999999a')
    E.I('s_mul_i32 s18, s17, 10'); E.I('s_sub_u32 s18, s16, s18')
    E.I('s_lshl_b32 s18, s18, 8')
    E.I('v_add_u32 v1, s18, v0')
    E.I('v_lshrrev_b32 v2, 6, v1')
    E.I('v_and_b32 v3, 63, v1')
    E.I('v_and_b32 v4, 15, v3')
    E.I('v_lshl_add_u32 v4, v2, 4, v4')
    E.I('v_lshrrev_b32 v5, 4, v3')
    E.I('v_mul_u32_u24 v6, 52, v2'); E.I('v_lshrrev_b32 v6, 8, v6')
    E.I('v_mul_u32_u24 v7, 5, v6'); E.I('v_sub_u32 v7, v2, v7')
    E.I('v_mul_u32_u24 v8, 74, v6'); E.I('v_add_u32 v8, s17, v8')
    E.I('v_mul_u32_u24 v8, 5, v8'); E.I('v_add_u32 v8, v8, v7')
    E.I('v_lshlrev_b32 v8, 10, v8'); E.I('v_lshl_add_u32 v8, v3, 4, v8')
    E.I(f'v_add_u32 v8, {WS_W3}, v8')
    E.I('s_cmp_ge_u32 s17, 20'); E.I('s_cbranch_scc1 K0_WD')
    srd(E, 24, 20, 21, 640*1280)
    E.I('s_cmp_ge_u32 s17, 16'); E.I('s_cbranch_scc1 K0_WO2')
    E.I('v_lshrrev_b32 v9, 1, v5'); E.I('s_lshl_b32 s18, s17, 1'); E.I('v_add_u32 v9, s18, v9')
    E.I('v_mul_u32_u24 v9, 20, v9'); E.I('v_and_b32 v10, 1, v5'); E.I('v_lshl_add_u32 v9, v10, 2, v9')
    E.I('s_mov_b32 s19, 8')
    E.I('s_branch K0_GO')
    E.label('K0_WO2')
    E.I('s_sub_u32 s18, s17, 16'); E.I('s_lshl_b32 s18, s18, 2'); E.I('v_add_u32 v9, s18, v5')
    E.I('v_mul_u32_u24 v9, 40, v9'); E.I('v_add_u32 v9, 16, v9')
    E.I('s_mov_b32 s19, 20')
    E.I('s_branch K0_GO')
    E.label('K0_WD')
    srd(E, 24, 22, 23, 1728*1280)
    E.I('s_sub_u32 s18, s17, 20'); E.I('s_lshl_b32 s18, s18, 5')
    E.I('v_lshlrev_b32 v9, 3, v5'); E.I('v_add_u32 v9, s18, v9')
    E.I('s_mov_b32 s19, 4')
    E.label('K0_GO')
    E.reset_state()
    E.I('s_nop 4')
    E.I('v_mul_u32_u24 v9, 1280, v9'); E.I('v_lshl_add_u32 v9, v4, 1, v9')
    E.I('s_mul_i32 s19, s19, 1280')
    for j in range(4):
        E.I(f'buffer_load_ushort v{12+j}, v9, s[24:27], 0 offen offset:{1280*j}')
    for j in range(4):
        E.I(f'buffer_load_ushort v{16+j}, v9, s[24:27], s19 offen offset:{1280*j}')
    for j in range(4):
        E.I(f'v_lshl_or_b32 v{20+j}, v{13+2*j}, 16, v{12+2*j}')
    E.I('buffer_store_dwordx4 v[20:23], v8, s[12:15], 0 offen')
    E.waitcnt(vm=0)
    ts_end(E, 0, 6, 7)
    E.label('K0_END')
    return kernel_text(name, E.text(), 64, 64)
if __name__ == '__main__':
    print(gen_k0())
```

```python
from common import *

import os
def OPT(n): return os.environ.get('K1_' + n) == '1'
SLOT = 20480; NSLOT = 5
XST = SLOT * NSLOT
LDS_BYTES = XST + 4 * 3 * 4096

V_TID=0; V_LANE=1
V_TRLO=2
V_TRHI=7
V_WD=12
V_XD=17
V_XR=21
V_ST=25
V_ONE=30
V_T=32
ACC=[96, 176]
A_X=0; A_W=160
S_X=8; S_W=12; S_WS=16
S_WAVE=20; S_RB=21; S_TYPE=22; S_WOFF=23; S_XOFF=24; S_M0W=25; S_M0X=26; S_SCALE=27; S_TMP=28

PERM_QK = [[0,1,2,3,5,6,4,7],[0,1,2,3,4,5,6,7],[0,1,2,3,4,5,6,7],[1,2,3,4,0,5,6,7],[0,1,3,4,5,6,2,7]]
HEAD_SLOTS = [((0,0),(0,1)),((0,2),(1,0)),((1,1),(1,2)),((2,0),(2,1)),((2,2),(2,3)),((3,0),(3,1)),((3,3),(4,0)),((4,1),(4,2))]
SINGLE_SLOTS = [(0,3),(1,3),(3,2),(4,3)]

def common_setup(E):
    E.I(f'v_and_b32 v{V_LANE}, 63, v0')
    E.I(f'v_lshrrev_b32 v{V_T}, 6, v0')
    E.I(f'v_readfirstlane_b32 s{S_WAVE}, v{V_T}')
    E.I(f's_lshl_b32 s{S_TMP}, s{S_RB}, 7'); E.I(f's_lshl_b32 s{S_TMP+1}, s{S_WAVE}, 5')
    E.I(f's_add_u32 s{S_TMP}, s{S_TMP}, s{S_TMP+1}')
    E.I(f'v_lshrrev_b32 v{V_T}, 3, v{V_LANE}')
    E.I(f'v_add_u32 v{V_T}, s{S_TMP}, v{V_T}')
    E.I(f'v_mul_u32_u24 v{V_T}, 1280, v{V_T}')
    E.I(f'v_and_b32 v{V_T+1}, 7, v{V_LANE}')
    E.I(f'v_lshrrev_b32 v{V_T+2}, 4, v{V_LANE}')
    for i in range(4):
        E.I(f'v_add_u32 v{V_T+3}, {4*(i&1)}, v{V_T+2}')
        E.I(f'v_xor_b32 v{V_T+3}, v{V_T+1}, v{V_T+3}')
        E.I(f'v_lshl_add_u32 v{V_XD+i}, v{V_T+3}, 4, v{V_T}')
        if i: E.I(f'v_add_u32 v{V_XD+i}, {i*(8*1280-1024)}, v{V_XD+i}')
    E.I(f's_mul_i32 s{S_M0X}, s{S_WAVE}, 12288'); E.I(f's_add_u32 s{S_M0X}, s{S_M0X}, {XST}')
    E.I(f'v_and_b32 v{V_T}, 31, v{V_LANE}')
    E.I(f'v_lshrrev_b32 v{V_T+1}, 1, v{V_T}'); E.I(f'v_and_b32 v{V_T+1}, 7, v{V_T+1}')
    E.I(f'v_lshrrev_b32 v{V_T+2}, 5, v{V_LANE}')
    E.I(f'v_lshlrev_b32 v{V_T}, 7, v{V_T}'); E.I(f'v_add_u32 v{V_T}, s{S_M0X}, v{V_T}')
    for s in range(4):
        E.I(f'v_add_u32 v{V_T+3}, {2*s}, v{V_T+2}')
        E.I(f'v_xor_b32 v{V_T+3}, v{V_T+3}, v{V_T+1}')
        E.I(f'v_lshl_add_u32 v{V_XR+s}, v{V_T+3}, 4, v{V_T}')

def setup_glu(E):
    l = V_LANE; t = V_T
    E.I(f'v_bfe_u32 v{t}, v{l}, 4, 1')
    E.I(f'v_lshrrev_b32 v{t+1}, 5, v{l}')
    E.I(f'v_bfe_u32 v{t+2}, v{l}, 2, 2')
    E.I(f'v_and_b32 v{t+3}, 3, v{l}')
    E.I(f'v_lshl_add_u32 v{t+4}, v{t+1}, 3, v{t+2}')
    E.I(f'v_lshlrev_b32 v{t+4}, 7, v{t+4}')
    E.I(f'v_lshl_add_u32 v{t+4}, v{t}, 13, v{t+4}')
    E.I(f'v_and_b32 v{t+5}, 1, v{t+3}'); E.I(f'v_lshlrev_b32 v{t+5}, 1, v{t+5}')
    E.I(f'v_lshrrev_b32 v{t+6}, 1, v{t+3}'); E.I(f'v_add_u32 v{t+5}, v{t+5}, v{t+6}')
    E.I(f'v_lshl_add_u32 v{t+4}, v{t+5}, 3, v{t+4}')
    E.I(f'v_lshrrev_b32 v{t+5}, 1, v{t+2}')
    E.I(f'v_lshl_add_u32 v{t+5}, v{t}, 1, v{t+5}')
    for j in range(4):
        E.I(f'v_xor_b32 v{t+6}, {j}, v{t+5}')
        E.I(f'v_lshl_add_u32 v{V_TRLO+j}, v{t+6}, 5, v{t+4}')
        E.I(f'v_add_u32 v{V_TRHI+j}, {3*SLOT}, v{V_TRLO+j}')
    E.I(f's_and_b32 s{S_TMP}, s{S_WAVE}, 1'); E.I(f's_lshl_b32 s{S_TMP}, s{S_TMP}, 5')
    E.I(f's_lshr_b32 s{S_TMP+1}, s{S_WAVE}, 1'); E.I(f's_lshl_b32 s{S_TMP+1}, s{S_TMP+1}, 1')
    E.I(f'v_lshrrev_b32 v{t}, 3, v{l}')
    E.I(f'v_bfe_u32 v{t+1}, v{l}, 4, 1')
    E.I(f'v_or_b32 v{t+1}, s{S_TMP+1}, v{t+1}')
    E.I(f'v_bfe_u32 v{t+2}, v{l}, 1, 2')
    E.I(f'v_xor_b32 v{t+2}, v{t+2}, v{t+1}')
    E.I(f'v_lshlrev_b32 v{t+2}, 5, v{t+2}')
    E.I(f'v_and_b32 v{t+3}, 1, v{l}'); E.I(f'v_lshl_add_u32 v{t+2}, v{t+3}, 4, v{t+2}')
    E.I(f'v_add_u32 v{t}, s{S_TMP}, v{t}')
    E.I(f'v_mul_u32_u24 v{t}, 3456, v{t}')
    E.I(f'v_add_u32 v{V_WD}, v{t}, v{t+2}')
    for i in range(1, 4):
        E.I(f'v_add_u32 v{V_WD+i}, {i*(8*3456-1024)}, v{V_WD}')
    E.I(f's_lshl_b32 s{S_M0W}, s{S_WAVE}, 12')
    E.I(f's_lshl_b32 s{S_TMP}, s{S_RB}, 1'); E.I(f's_lshr_b32 s{S_TMP+1}, s{S_WAVE}, 1'); E.I(f's_add_u32 s{S_TMP}, s{S_TMP}, s{S_TMP+1}')
    E.I(f's_mul_i32 s{S_TMP}, s{S_TMP}, {NKS*4096}')
    E.I(f's_and_b32 s{S_TMP+1}, s{S_WAVE}, 1'); E.I(f's_lshl_b32 s{S_TMP+1}, s{S_TMP+1}, 11')
    E.I(f's_add_u32 s{S_TMP}, s{S_TMP}, s{S_TMP+1}'); E.I(f's_add_u32 s{S_TMP}, s{S_TMP}, {WS_ACT}')
    E.I(f'v_bfe_u32 v{t}, v{l}, 4, 1'); E.I(f'v_lshlrev_b32 v{t}, 10, v{t}')
    E.I(f'v_lshrrev_b32 v{t+1}, 5, v{l}'); E.I(f'v_lshl_add_u32 v{t}, v{t+1}, 8, v{t}')
    E.I(f'v_and_b32 v{t+1}, 15, v{l}'); E.I(f'v_lshl_add_u32 v{t}, v{t+1}, 4, v{t}')
    E.I(f'v_add_u32 v{V_ST}, s{S_TMP}, v{t}')

def setup_qkv(E, isV):
    l = V_LANE; t = V_T
    E.I(f'v_lshrrev_b32 v{t+1}, 5, v{l}')
    E.I(f'v_bfe_u32 v{t+2}, v{l}, 2, 2')
    E.I(f'v_lshl_add_u32 v{t+4}, v{t+1}, 3, v{t+2}')
    E.I(f'v_mul_u32_u24 v{t+4}, 320, v{t+4}')
    E.I(f'v_bfe_u32 v{t}, v{l}, 4, 1'); E.I(f'v_and_b32 v{t+3}, 3, v{l}')
    E.I(f'v_lshl_add_u32 v{t+3}, v{t}, 2, v{t+3}')
    E.I(f'v_lshlrev_b32 v{t+5}, 2, v{t+3}')
    for j in range(5):
        perm = list(range(8)) if isV else PERM_QK[j]
        word = sum(perm[c] << (4*c) for c in range(8))
        E.I(f's_mov_b32 s{S_TMP}, {word}')
        E.I(f'v_lshrrev_b32 v{t+6}, v{t+5}, s{S_TMP}')
        E.I(f'v_and_b32 v{t+6}, 15, v{t+6}')
        E.I(f'v_lshl_add_u32 v{t+6}, v{t+6}, 3, v{t+4}')
        E.I(f'v_add_u32 v{V_TRLO+j}, {64*j}, v{t+6}')
        E.I(f'v_add_u32 v{V_TRHI+j}, {3*SLOT}, v{V_TRLO+j}')
    E.I(f's_lshl_b32 s{S_TMP}, s{S_WAVE}, 4')
    for i in range(5):
        E.I(f'v_add_u32 v{t}, {64*i}, v{l}')
        E.I(f'v_mul_u32_u24 v{t+1}, 3277, v{t}'); E.I(f'v_lshrrev_b32 v{t+1}, 16, v{t+1}')
        E.I(f'v_mul_u32_u24 v{t+2}, 20, v{t+1}'); E.I(f'v_sub_u32 v{t+2}, v{t}, v{t+2}')
        E.I(f'v_add_u32 v{t+1}, s{S_TMP}, v{t+1}')
        E.I(f'v_mul_u32_u24 v{t+1}, 3840, v{t+1}')
        E.I(f'v_lshl_add_u32 v{V_WD+i}, v{t+2}, 4, v{t+1}')
        if 0 < i < 4: E.I(f'v_subrev_u32 v{V_WD+i}, {1024*i}, v{V_WD+i}')
    E.I(f's_mul_i32 s{S_M0W}, s{S_WAVE}, 5120')
    E.I(f's_lshl_b32 s{S_TMP}, s{S_RB}, 2'); E.I(f's_add_u32 s{S_TMP}, s{S_TMP}, s{S_WAVE}')
    if not isV:
        E.I(f's_lshl_b32 s{S_TMP+1}, s{S_TMP}, 10')
        E.I(f'v_lshlrev_b32 v{t}, 4, v{l}'); E.I(f'v_add_u32 v{V_ST}, s{S_TMP+1}, v{t}')
        E.I(f's_lshl_b32 s{S_TMP+1}, s{S_TMP}, 8')
        E.I(f'v_and_b32 v{t}, 31, v{l}'); E.I(f'v_lshlrev_b32 v{t}, 3, v{t}')
        E.I(f'v_lshrrev_b32 v{t+1}, 5, v{l}'); E.I(f'v_lshl_add_u32 v{t}, v{t+1}, 14, v{t}')
        E.I(f'v_add_u32 v{V_ST+1}, s{S_TMP+1}, v{t}')
    else:
        E.I(f's_mul_i32 s{S_TMP+1}, s{S_TMP}, {VT}')
        E.I(f'v_lshrrev_b32 v{t+3}, 5, v{l}'); E.I(f'v_mul_u32_u24 v{t+3}, 336, v{t+3}')
        E.I(f'v_add_u32 v{t+3}, s{S_TMP+1}, v{t+3}')
        E.I(f's_mov_b32 s{S_TMP+2}, {VH}')
        E.I(f'v_bfe_u32 v{t}, v{l}, 2, 3'); E.I(f'v_mul_lo_u32 v{t}, v{t}, s{S_TMP+2}')
        E.I(f'v_and_b32 v{t+1}, 3, v{l}'); E.I(f'v_mul_u32_u24 v{t+1}, 336, v{t+1}')
        E.I(f'v_add_u32 v{t}, v{t}, v{t+1}'); E.I(f'v_add_u32 v{t}, s{S_TMP+1}, v{t}')
        E.I(f'v_add_u32 v{V_ONE}, 320, v{t}')
        for i in range(4): E.I(f'v_mov_b32 v{V_T+16+i}, 0x3f803f80')
        for j in range(5):
            E.I(f'v_and_b32 v{t}, 31, v{l}'); E.I(f'v_add_u32 v{t}, {32*j}, v{t}')
            E.I(f'v_mul_u32_u24 v{t+1}, 3277, v{t}'); E.I(f'v_lshrrev_b32 v{t+1}, 16, v{t+1}')
            E.I(f'v_mul_u32_u24 v{t+2}, 20, v{t+1}'); E.I(f'v_sub_u32 v{t+2}, v{t}, v{t+2}')
            E.I(f'v_mul_lo_u32 v{t+1}, v{t+1}, s{S_TMP+2}')
            E.I(f'v_lshl_add_u32 v{t+1}, v{t+2}, 4, v{t+1}')
            E.I(f'v_add_u32 v{V_ST+j}, v{t+1}, v{t+3}')

def epi_glu(acc, soff):
    L = []
    for j in range(4):
        g = acc + 16*j; u = g + 8
        for i in range(8): L.append(f'v_mul_f32 v{g+i}, 0xbfb8aa3b, v{g+i}')
        for i in range(8): L.append(f'v_exp_f32 v{g+i}, v{g+i}')
        for i in range(8): L.append(f'v_add_f32 v{g+i}, 1.0, v{g+i}')
        for i in range(8): L.append(f'v_rcp_f32 v{g+i}, v{g+i}')
        for i in range(8): L.append(f'v_mul_f32 v{u+i}, v{u+i}, v{g+i}')
        for i in range(4): L.append(f'v_cvt_pk_bf16_f32 v{g+i}, v{u+2*i}, v{u+2*i+1}')
        L.append(f'buffer_store_dwordx4 v[{g}:{g+3}], v{V_ST}, s[{S_WS}:{S_WS+3}], s{soff + (j>>1)} offen offset:{(j&1)*512}')
    return L

def epi_qk(acc, soff1, soff2):
    L = []
    tmp = [V_T, V_T+4, V_T+8, V_T+12]
    n = 0
    def slot(ts): return acc + 16*ts[0] + 4*ts[1]
    for h in range(8):
        d = tmp[n % 4]; n += 1
        a, b = slot(HEAD_SLOTS[h][0]), slot(HEAD_SLOTS[h][1])
        L += [f'v_mul_f32 v{r}, s{S_SCALE}, v{r}' for r in list(range(a, a+4)) + list(range(b, b+4))]
        L += [f'v_cvt_pk_bf16_f32 v{d}, v{a}, v{a+1}', f'v_cvt_pk_bf16_f32 v{d+1}, v{a+2}, v{a+3}',
              f'v_cvt_pk_bf16_f32 v{d+2}, v{b}, v{b+1}', f'v_cvt_pk_bf16_f32 v{d+3}, v{b+2}, v{b+3}']
        L.append(f's_add_u32 s{S_TMP}, s{soff1}, {h*65536}')
        L.append(f'buffer_store_dwordx4 v[{d}:{d+3}], v{V_ST}, s[{S_WS}:{S_WS+3}], s{S_TMP} offen')
    for i in range(4):
        d = tmp[n % 4]; n += 1
        a = slot(SINGLE_SLOTS[i])
        L += [f'v_mul_f32 v{r}, s{S_SCALE}, v{r}' for r in range(a, a+4)]
        L += [f'v_cvt_pk_bf16_f32 v{d}, v{a}, v{a+1}', f'v_cvt_pk_bf16_f32 v{d+1}, v{a+2}, v{a+3}']
        L.append(f's_add_u32 s{S_TMP}, s{soff2}, {i*32768}')
        L.append(f'buffer_store_dwordx2 v[{d}:{d+1}], v{V_ST+1}, s[{S_WS}:{S_WS+3}], s{S_TMP} offen')
    return L

def epi_v(acc, soff):
    L = []
    tmp = [V_T, V_T+4, V_T+8, V_T+12]
    n = 0
    for j in range(5):
        for s in range(2):
            d = tmp[n % 4]; n += 1
            a = acc + 16*j + 8*s
            for i in range(4): L.append(f'v_cvt_pk_bf16_f32 v{d+i}, v{a+2*i}, v{a+2*i+1}')
            L.append(f'buffer_store_dwordx4 v[{d}:{d+3}], v{V_ST+j}, s[{S_WS}:{S_WS+3}], s{soff} offen offset:{672*s}')
    L.append(f'buffer_store_dwordx4 v[{V_T+16}:{V_T+19}], v{V_ONE}, s[{S_WS}:{S_WS+3}], s{soff} offen')
    return L

class Path:
    def __init__(self, E, kind, npanels):
        self.E = E; self.kind = kind; self.np = npanels
        self.NT = 4 if kind == 'G' else 5
        self.pitch = 128 if kind == 'G' else 320
        self.wpitch = 3456 if kind == 'G' else 3840
        self.nch = 10 * npanels
    def dma_w(self, cg):
        if cg >= self.nch: return []
        p, c = divmod(cg, 10)
        slot = cg % NSLOT
        L = []
        pb = 128 if self.kind == 'G' else 320
        L.append(('s', f's_add_u32 s{S_TMP+4}, s{S_WOFF}, {c*64*self.wpitch + p*pb}'))
        L.append(('s', f's_add_u32 m0, s{S_M0W}, {slot*SLOT}'))
        n = 4 if self.kind == 'G' else 5
        for i in range(n):
            if i == 4:
                L.append(('s', f's_add_u32 m0, s{S_M0W}, {slot*SLOT + 4096}'))
                L.append(('W', f'buffer_load_dwordx4 v{V_WD+4}, s[{S_W}:{S_W+3}], s{S_TMP+4} offen lds'))
            else:
                L.append(('W', f'buffer_load_dwordx4 v{V_WD+i}, s[{S_W}:{S_W+3}], s{S_TMP+4} offen offset:{1024*i} lds'))
        return [(k, t, cg) for k, t in L]
    def dma_x(self, c):
        if c >= 10: return []
        L = [('s', f's_add_u32 m0, s{S_M0X}, {(c%3)*4096}'), ('s', f's_mov_b32 s{S_XOFF}, {c*128}')]
        for i in range(4):
            L.append(('X', f'buffer_load_dwordx4 v{V_XD+i}, s[{S_X}:{S_X+3}], s{S_XOFF} offen offset:{1024*i} lds'))
        return [(k, t, c) for k, t in L]
    def put(self, item):
        k, t, c = item
        self.E.I(t, tag=(k, c) if k != 's' else None)
    def xread(self, c):
        for s in range(4):
            self.E.I(f'ds_read_b128 a[{A_X+16*c+4*s}:{A_X+16*c+4*s+3}], v{V_XR+s} offset:{(c%3)*4096}')
    def wread(self, cg, s, j):
        slot = cg % NSLOT
        base = (V_TRLO if slot < 3 else V_TRHI) + j
        off = (slot % 3 if slot < 3 else slot - 3) * SLOT + s * 16 * self.pitch
        par = (cg*4 + s) & 1
        d = A_W + 20*par + 4*j
        return [f'ds_read_b64_tr_b16 a[{d}:{d+1}], v{base} offset:{off}',
                f'ds_read_b64_tr_b16 a[{d+2}:{d+3}], v{base} offset:{off + 4*self.pitch}']
    def emit(self, epi_fn):
        E = self.E; NT = self.NT
        for c in range(3):
            for it in self.dma_x(c): self.put(it)
            for it in self.dma_w(c): self.put(it)
        stamp(E)
        E.wait_tag(('W', 0)); E.I('s_barrier')
        stamp(E)
        self.xread(0)
        for j in range(NT):
            for t in self.wread(0, 0, j): E.I(t)
        pending_epi = []
        for p in range(self.np):
            acc = ACC[p & 1]
            nslots = 10*4*NT
            slot_i = 0
            epi = pending_epi
            epi_start = NT + 2
            for c in range(10):
                cg = 10*p + c
                dq = []
                if p == 0 and not OPT('NOX'): dq += self.dma_x(c + 3)
                if not OPT('NODMA'): dq += self.dma_w(cg + 3)
                ndma = sum(1 for it in dq if it[0] != 's'); issued = 0
                for s in range(4):
                    last_step = (s == 3)
                    if last_step and cg + 1 < self.nch:
                        while dq: self.put(dq.pop(0))
                        E.wait_tag(('W', cg + 1)); E.I('s_barrier')
                        if p == 0 and c + 1 < 10: self.xread(c + 1)
                    for j in range(NT):
                        ks = 4*c + s
                        wf = A_W + 20*((cg*4 + s) & 1) + 4*j
                        xf = A_X + 4*ks
                        d = acc + 16*j
                        srcC = '0' if ks == 0 else f'v[{d}:{d+15}]'
                        if self.kind == 'V':
                            E.I(f'v_mfma_f32_32x32x16_bf16 v[{d}:{d+15}], a[{xf}:{xf+3}], a[{wf}:{wf+3}], {srcC}')
                        else:
                            E.I(f'v_mfma_f32_32x32x16_bf16 v[{d}:{d+15}], a[{wf}:{wf+3}], a[{xf}:{xf+3}], {srcC}')
                        if s < 3: nxt = (cg, s + 1)
                        else: nxt = (cg + 1, 0)
                        if nxt[0] < self.nch:
                            for t in self.wread(nxt[0], nxt[1], j): E.I(t)
                        slot_c = s*NT + j
                        if OPT('SPREAD'):
                            go = dq and issued < ndma and slot_c >= 1 + issued * (3*NT - 1) / ndma
                        else: go = dq and slot_c > 0
                        if go:
                            it = dq.pop(0); self.put(it)
                            while it[0] == 's' and dq:
                                it = dq.pop(0); self.put(it)
                            issued += 1
                        if epi and slot_i >= epi_start:
                            rem = nslots - 4 - slot_i
                            k = max(1, -(-len(epi) // max(rem, 1)))
                            for _ in range(min(k, len(epi))): E.I(epi.pop(0))
                        slot_i += 1
            while epi: E.I(epi.pop(0))
            stamp(E)
            pending_epi = epi_fn(p, acc) if not OPT('NOEPI') else []
        for t in pending_epi: E.I(t)

def gen_k1(name='k1_kernel'):
    E = Emitter()
    E.I('s_cmp_ge_u32 s2, 256'); E.I('s_cbranch_scc1 K1_END'); ts_begin(E)
    E.I(f's_load_dwordx2 s[4:5], s[0:1], {KA_WS}')
    E.I(f's_load_dwordx2 s[6:7], s[0:1], {KA_WQKV}')
    E.I(f's_load_dwordx4 s[32:35], s[0:1], {KA_WG}')
    E.I('s_and_b32 s36, s2, 7'); E.I('s_lshr_b32 s37, s2, 3')
    E.I('s_and_b32 s38, s36, 1'); E.I('s_lshl_b32 s38, s38, 3'); E.I('s_and_b32 s39, s37, 7')
    E.I(f's_add_u32 s{S_RB}, s38, s39')
    E.I('s_lshr_b32 s38, s36, 1'); E.I('s_lshl_b32 s38, s38, 2'); E.I('s_lshr_b32 s39, s37, 3')
    E.I(f's_add_u32 s{S_TYPE}, s38, s39')
    E.I(f's_cmp_eq_u32 s{S_TYPE}, 15'); E.I('s_cbranch_scc1 K1_END')
    E.waitcnt(lg=0)
    srd(E, S_WS, 4, 5, WS_SIZE)
    E.I(f's_add_u32 s40, s4, {WS_XN}'); E.I('s_addc_u32 s41, s5, 0')
    srd(E, S_X, 40, 41, 2048*1280)
    common_setup(E)
    E.I(f's_cmp_ge_u32 s{S_TYPE}, 6'); E.I('s_cbranch_scc1 K1_GLU')
    srd(E, S_W, 6, 7, 640*3840)
    E.I(f's_mul_i32 s{S_WOFF}, s{S_TYPE}, 640')
    E.I(f's_cmp_ge_u32 s{S_TYPE}, 4'); E.I('s_cbranch_scc1 K1_V')
    setup_qkv(E, False)
    E.I(f's_and_b32 s42, s{S_TYPE}, 1'); E.I('s_lshl_b32 s42, s42, 4')
    E.I(f's_cmp_lt_u32 s{S_TYPE}, 2')
    E.I(f's_mov_b32 s45, {WS_KF1}'); E.I(f's_cselect_b32 s43, {WS_QF1}, s45')
    E.I(f's_mov_b32 s45, {WS_KF2}'); E.I(f's_cselect_b32 s44, {WS_QF2}, s45')
    E.I(f's_mov_b32 s45, 1.0'); E.I(f's_cselect_b32 s{S_SCALE}, {QSCALE}, s45')
    E.I('s_lshl_b32 s45, s42, 16'); E.I('s_add_u32 s43, s43, s45')
    E.I('s_lshl_b32 s45, s42, 14'); E.I('s_add_u32 s44, s44, s45')
    E.I(f's_add_u32 s46, s43, {8*65536}'); E.I(f's_add_u32 s47, s44, {8*16384}')
    P = Path(E, 'Q', 2)
    P.emit(lambda p, acc: epi_qk(acc, 43 + 3*p, 44 + 3*p))
    ts_end(E, 1, 4, 5)
    E.I('s_endpgm')
    E.label('K1_V'); E.reset_state(); E.I('s_nop 4')
    setup_qkv(E, True)
    E.I(f's_and_b32 s42, s{S_TYPE}, 1'); E.I('s_lshl_b32 s42, s42, 4')
    E.I(f's_mul_i32 s43, s42, {VH}'); E.I(f's_add_u32 s43, s43, {WS_VF}')
    E.I(f's_add_u32 s44, s43, {8*VH}')
    E.nstamp = 1
    P = Path(E, 'V', 2)
    P.emit(lambda p, acc: epi_v(acc, 43 + p))
    ts_end(E, 1, 4, 5)
    E.I('s_endpgm')
    E.label('K1_GLU'); E.reset_state(); E.I('s_nop 4')
    E.I(f's_cmp_lt_u32 s{S_WAVE}, 2')
    E.I('s_cselect_b32 s40, s32, s34'); E.I('s_cselect_b32 s41, s33, s35')
    srd(E, S_W, 40, 41, 640*3456)
    setup_glu(E)
    E.I(f's_sub_u32 s42, s{S_TYPE}, 6'); E.I('s_mul_i32 s42, s42, 3')
    E.I(f's_lshl_b32 s{S_WOFF}, s42, 7')
    for p in range(3):
        E.I(f's_add_u32 s45, s42, {p}'); E.I('s_lshl_b32 s45, s45, 1'); E.I('s_add_u32 s45, s45, 20')
        E.I(f's_lshl_b32 s{46+2*p}, s45, 12'); E.I(f's_add_u32 s{47+2*p}, s{46+2*p}, 4096')
    E.nstamp = 1
    P = Path(E, 'G', 3)
    P.emit(lambda p, acc: epi_glu(acc, 46 + 2*p))
    ts_end(E, 1, 4, 5)
    E.label('K1_END')
    print('k1 nops', E.nops, E.count, file=__import__('sys').stderr)
    from collections import Counter
    print(Counter(w.split('@')[0] for n, w in E.nop_log).most_common(8), file=__import__('sys').stderr)
    return kernel_text(name, E.text(), 512, 256)
if __name__ == '__main__':
    print(gen_k1())
```

```python
from common import *
from sched import *
import os
A_ACC=0; A_K1=80; A_V=120; A_Q1=200; A_B2=208
V_A=1; V_A2=2; V_L=3; V_L2=4; V_AK2=5; V_AV=6; V_HM=7; V_OA=8; V_OB=9; V_FA=10; V_FL=11
V_O3=12
V_R3=15
V_WA=18
V_K2=20
V_Q2=40
V_SA=44; V_SB=60; V_SC=76; V_MG=92; V_O=108; V_P=124
V_T=140
V_X=160
V_B0=172; V_B1=208
S_WS=8; S_X=12; S_OUT=16; S_W=20; S_SA=21; S_SW=22; S_SAO=23; S_SWO=24; S_HEAD=25; S_QB=26; S_RB=27; S_CB=28
S_K1=29; S_K2=30; S_VB=31; S_T=32; S_G=36; S_STA=38; S_STB=39; S_MASK=40
S_BIAS=72
S_FLG=82
PITCH=336; PART=64*PITCH
LDS_BYTES = 4*PART + 2048
NH = 14; NO = 5
DEPTH = 3

def mask_const(i):
    m = 0
    for l in range(64):
        b = 8*(i >> 2) + 4*(l >> 5) + (i & 3)
        if b > (l & 31): m |= 1 << l
    return m
def R(kind, b, n): return f'{kind}[{b}:{b+n-1}]'
def gbuf(st):
    k = st % DEPTH
    return [('v', V_B0), ('v', V_B1), ('a', A_B2)][k]

W = f's[{S_WS}:{S_WS+3}]'
def g_loads(st):
    kind, b = gbuf(st)
    last = (st == NH-1)
    va, va2 = (V_L, V_L2) if last else (V_A, V_A2)
    if st < NH: sa, sw, k = S_SA, S_SW, st
    else: sa, sw, k = S_SAO, S_SWO, st - NH
    LW = [it(f's_add_u32 s{S_G+1}, s{sw}, {k*5120}')]
    for i in range(4): LW.append(it(f'buffer_load_dwordx4 {R(kind, b+16+4*i, 4)}, v{va}, {W}, s{S_G+1} offen offset:{1024*i}'))
    LW.append(it(f'buffer_load_dwordx4 {R(kind, b+32, 4)}, v{va2}, {W}, s{S_G+1} offen'))
    LA = [it(f's_add_u32 s{S_G}, s{sa}, {k*4096}')]
    for i in range(4): LA.append(it(f'buffer_load_dwordx4 {R(kind, b+4*i, 4)}, v{va}, {W}, s{S_G} offen offset:{1024*i}'))
    return LW, LA
def g_mfmas(st):
    kind, b = gbuf(st)
    L = []
    for nt in range(5):
        for tt in range(4):
            d = A_ACC + 4*(nt*4 + tt)
            C = '0' if st == 0 else R('a', d, 4)
            L.append(it(f'v_mfma_f32_16x16x32_bf16 {R("a", d, 4)}, {R(kind, b+16+4*nt, 4)}, {R(kind, b+4*tt, 4)}, {C}'))
    return L
def mix(mf, ld):
    out = []; ld = list(ld)
    for i, m in enumerate(mf):
        out.append(m)
        if ld and i % 2 == 0:
            x = ld.pop(0); out.append(x)
            while x.text and x.text.startswith('s_') and ld:
                x = ld.pop(0); out.append(x)
    return out + ld

def S_mfma(q, t, dst, C):
    return [it(f'v_mfma_f32_32x32x16_bf16 {R("v", dst, 16)}, {R("a", A_K1+4*t, 4)}, {R("a", A_Q1+4*q, 4)}, {C}'),
            it(f'v_mfma_f32_32x32x8_bf16 {R("v", dst, 16)}, {R("v", V_K2+2*t, 2)}, {R("v", V_Q2+2*q, 2)}, {R("v", dst, 16)}')]
def maxes(src, first=False):
    m0, m1 = V_T, V_T+1; L = []
    st = 0
    if first:
        L += [it(f'v_max_f32 v{m0}, v{src}, v{src+1}'), it(f'v_max_f32 v{m1}, v{src+2}, v{src+3}')]; st = 4
    for k, i in enumerate(range(st, 16, 2)):
        m = m0 if k % 2 == 0 else m1
        L.append(it(f'v_max3_f32 v{m}, v{src+i}, v{src+i+1}, v{m}'))
    return L
def PV(t, P, first=False):
    L = []
    for s in range(2):
        v = A_V + 8*t + 4*s
        C = '0' if (first and s == 0) else R('v', V_O, 16)
        L.append(it(f'v_mfma_f32_32x32x16_bf16 {R("v", V_O, 16)}, {R("a", v, 4)}, {R("v", P+4*s, 4)}, {C}'))
    return L
def exps(S): return [it(f'v_exp_f32 v{S+i}, v{S+i}') for i in range(16)]
def cvts(S, P): return [it(f'v_cvt_pk_bf16_f32 v{P+i}, v{S+2*i}, v{S+2*i+1}') for i in range(8)]
def weave(a, b):
    out = []; n = len(a)
    if n == 0: return list(b)
    step = len(b) / n
    j = 0
    for i, m in enumerate(a):
        out.append(m)
        k = int(round((i + 1) * step))
        out += b[j:k]; j = k
    return out + b[j:]

def attention(q):
    T = lambda t: q + t
    L = []
    L += S_mfma(q, T(8), V_SA, '0') + S_mfma(q, T(0), V_SB, '0') + S_mfma(q, T(1), V_SC, '0')
    mg = [it(f'v_cndmask_b32 v{V_MG+i}, v{V_SA+i}, v{V_SB+i}, s[{S_MASK+2*i}:{S_MASK+2*i+1}]') for i in range(16)]
    L += mg
    L += weave(S_mfma(q, T(2), V_SA, '0'), maxes(V_MG, first=True))
    bufs = [V_SC, V_SA, V_SB]
    for t in range(1, 8):
        nx = S_mfma(q, T(t + 2), bufs[(t + 1) % 3], '0') if t + 2 <= 7 else []
        L += weave(nx, maxes(bufs[(t - 1) % 3]))
    m0, m1 = V_T, V_T+1
    L += [it(f'v_max_f32 v{m0}, v{m0}, v{m1}'), it(f'v_mov_b32 v{m1}, v{m0}'), it(f'v_permlane32_swap_b32 v{m0}, v{m1}'),
          it(f'v_max_f32 v{m0}, v{m0}, v{m1}')]
    L += [it(f'v_sub_f32 v{V_SC+i}, 0, v{m0}') for i in range(16)]
    NEG = R('v', V_SC, 16)
    a = [it(f'v_add_f32 v{V_MG+i}, v{V_MG+i}, v{V_SC+i}') for i in range(16)] + exps(V_MG)
    L += weave(S_mfma(q, T(1), V_SA, NEG) + S_mfma(q, T(2), V_SB, NEG), a)
    P0, P1 = V_P, V_P + 8
    for i in range(0, 16, 2):
        x, y = V_T + 2 + (i & 2), V_T + 3 + (i & 2)
        L += [it(f'v_cndmask_b32 v{x}, 0, v{V_MG+i}, s[{S_MASK+2*i}:{S_MASK+2*i+1}]'),
              it(f'v_cndmask_b32 v{y}, 0, v{V_MG+i+1}, s[{S_MASK+2*i+2}:{S_MASK+2*i+3}]'),
              it(f'v_sub_f32 v{V_MG+i}, v{V_MG+i}, v{x}'), it(f'v_sub_f32 v{V_MG+i+1}, v{V_MG+i+1}, v{y}'),
              it(f'v_cvt_pk_bf16_f32 v{P0+i//2}, v{x}, v{y}'), it(f'v_cvt_pk_bf16_f32 v{P1+i//2}, v{V_MG+i}, v{V_MG+i+1}')]
    pend = PV(T(0), P0, first=True) + PV(T(8), P1)
    sb = [V_SA, V_SB]; pb = [V_P, V_P + 8]
    for t in range(1, 8):
        S = sb[(t - 1) % 2]; P = pb[(t - 1) % 2]
        L += weave(pend, exps(S))
        L += cvts(S, P)
        pend = (S_mfma(q, T(t + 2), S, NEG) if t + 2 <= 7 else []) + PV(T(t), P)
    L += pend
    t = V_T + 6
    L += [it(f'v_mov_b32 v{t}, v{V_O+8}'), it(f'v_mov_b32 v{t+1}, v{V_O+8}'), it(f'v_permlane32_swap_b32 v{t}, v{t+1}'),
          it(f'v_rcp_f32 v{t}, v{t+1}')]
    L += [it(f'v_mul_f32 v{V_O+i}, v{V_O+i}, v{t}') for i in range(12)]
    D = V_T + 8
    L += [it(f'v_cvt_pk_bf16_f32 v{D+i}, v{V_O+2*i}, v{V_O+2*i+1}') for i in range(6)]
    L += [it(f's_add_u32 s{S_T}, s{S_STA}, {q*2048}'),
          it(f'buffer_store_dwordx4 {R("v", D, 4)}, v{V_OA}, {W}, s{S_T} offen sc1', tag='ost'),
          it(f's_add_u32 s{S_T+1}, s{S_STB}, {q*2048}'),
          it(f'buffer_store_dwordx2 {R("v", D+4, 2)}, v{V_OB}, {W}, s{S_T+1} offen sc1', tag='ost')]
    return L

def setup(E, have_waveid=False):
    l = V_T
    E.I(f'v_lshrrev_b32 v{l}, 6, v0'); E.I(f'v_readfirstlane_b32 s{S_W}, v{l}')
    E.I(f'v_and_b32 v{l}, 63, v0')
    E.I(f'v_lshlrev_b32 v{V_A}, 4, v{l}'); E.I(f'v_add_u32 v{V_A2}, 4096, v{V_A}')
    E.I('s_and_b32 s36, s2, 7'); E.I('s_lshr_b32 s37, s2, 3')
    E.I(f's_and_b32 s38, s36, 3'); E.I('s_lshl_b32 s38, s38, 3'); E.I('s_and_b32 s39, s37, 7'); E.I(f's_add_u32 s{S_RB}, s38, s39')
    E.I('s_lshr_b32 s38, s36, 2'); E.I('s_lshl_b32 s38, s38, 2'); E.I('s_lshr_b32 s39, s37, 3'); E.I(f's_add_u32 s{S_CB}, s38, s39')
    E.I(f's_lshl_b32 s{S_HEAD}, s{S_CB}, 2'); E.I(f's_add_u32 s{S_HEAD}, s{S_HEAD}, s{S_W}')
    E.I(f's_lshl_b32 s{S_QB}, s{S_RB}, 1')
    E.I(f'v_and_b32 v{l+1}, 31, v{l}'); E.I(f'v_lshrrev_b32 v{l+2}, 5, v{l}')
    E.I(f'v_lshlrev_b32 v{V_AK2}, 3, v{l+1}'); E.I(f'v_lshl_or_b32 v{V_AK2}, v{l+2}, 31, v{V_AK2}')
    E.I(f'v_mul_u32_u24 v{V_AV}, 336, v{l+2}'); E.I(f'v_lshl_add_u32 v{V_AV}, v{l+1}, 4, v{V_AV}')
    E.I(f'v_cmp_lt_u32 vcc, 20, v{l+1}'); E.I(f'v_mov_b32 v{l+3}, {OOB}')
    E.I(f'v_cndmask_b32 v{V_AV}, v{V_AV}, v{l+3}, vcc')
    E.I(f'v_mul_u32_u24 v{V_HM}, 0xffff, v{l+2}')

def attn_loads(E):
    E.I(f's_lshl_b32 s{S_T}, s{S_HEAD}, 16'); E.I(f's_lshl_b32 s{S_T+1}, s{S_QB}, 10'); E.I(f's_add_u32 s{S_T+1}, s{S_T+1}, s{S_T}')
    E.I(f's_add_u32 s{S_T+1}, s{S_T+1}, {WS_QF1}')
    for q in range(2): E.I(f'buffer_load_dwordx4 {R("a", A_Q1+4*q, 4)}, v{V_A}, {W}, s{S_T+1} offen offset:{1024*q}')
    E.I(f's_add_u32 s{S_K1}, s{S_T}, {WS_KF1}')
    E.I(f's_lshl_b32 s{S_T}, s{S_HEAD}, 14'); E.I(f's_lshl_b32 s{S_T+1}, s{S_QB}, 8'); E.I(f's_add_u32 s{S_T+1}, s{S_T+1}, s{S_T}')
    E.I(f's_add_u32 s{S_T+1}, s{S_T+1}, {WS_QF2}')
    for q in range(2): E.I(f'buffer_load_dwordx2 {R("v", V_Q2+2*q, 2)}, v{V_AK2}, {W}, s{S_T+1} offen offset:{256*q}')
    E.I(f's_add_u32 s{S_K2}, s{S_T}, {WS_KF2}')
    E.I(f's_mul_i32 s{S_VB}, s{S_HEAD}, {VH}'); E.I(f's_add_u32 s{S_VB}, s{S_VB}, {WS_VF}')
    for t in [8, 0, 1, 2, 3, 4, 5, 6, 7, 9]:
        E.I(f's_add_i32 s{S_T}, s{S_QB}, {t-8}')
        E.I(f's_cmp_lt_i32 s{S_T}, 0'); E.I(f's_cselect_b32 s{S_BIAS+t}, 0xf149, 0')
        E.I(f's_max_i32 s{S_T}, s{S_T}, 0')
        E.I(f's_lshl_b32 s{S_T+1}, s{S_T}, 10'); E.I(f's_add_u32 s{S_T+1}, s{S_T+1}, s{S_K1}')
        E.I(f'buffer_load_dwordx4 {R("a", A_K1+4*t, 4)}, v{V_A}, {W}, s{S_T+1} offen')
        E.I(f's_lshl_b32 s{S_T+2}, s{S_T}, 8'); E.I(f's_add_u32 s{S_T+2}, s{S_T+2}, s{S_K2}')
        E.I(f'buffer_load_dwordx2 {R("v", V_K2+2*t, 2)}, v{V_AK2}, {W}, s{S_T+2} offen')
def v_loads():
    L = []
    for t in [0, 8, 1, 2, 3, 4, 5, 6, 7, 9]:
        L += [it(f's_add_i32 s{S_T+2}, s{S_QB}, {t-8}'), it(f's_max_i32 s{S_T+2}, s{S_T+2}, 0'),
              it(f's_mul_i32 s{S_T+3}, s{S_T+2}, {VT}'), it(f's_add_u32 s{S_T+3}, s{S_T+3}, s{S_VB}')]
        for s in range(2):
            L.append(it(f'buffer_load_dwordx4 {R("a", A_V+8*t+4*s, 4)}, v{V_AV}, {W}, s{S_T+3} offen offset:{672*s}'))
    return L

def setup2(E):
    l = V_T; t = V_T + 4
    E.I(f'v_and_b32 v{l}, 63, v0')
    E.I(f'v_bfe_u32 v{V_OB}, v{l}, 4, 1'); E.I(f'v_lshlrev_b32 v{V_OB}, 10, v{V_OB}')
    E.I(f'v_and_b32 v{t}, 15, v{l}'); E.I(f'v_lshl_add_u32 v{V_OB}, v{t}, 4, v{V_OB}')
    E.I(f'v_lshrrev_b32 v{t}, 5, v{l}')
    E.I(f'v_lshl_add_u32 v{V_OA}, v{t}, 8, v{V_OB}')
    E.I(f'v_lshl_or_b32 v{V_OB}, v{t}, 31, v{V_OB}')
    s = S_T
    E.I(f's_mul_i32 s{s}, s{S_RB}, {NKS*4096}'); E.I(f's_add_u32 s{s}, s{s}, {WS_ACT}')
    E.I(f's_lshr_b32 s{s+1}, s{S_HEAD}, 1'); E.I(f's_and_b32 s{s+2}, s{S_HEAD}, 1')
    E.I(f's_lshl_b32 s{S_STA}, s{s+1}, 12'); E.I(f's_lshl_b32 s{s+3}, s{s+2}, 9')
    E.I(f's_add_u32 s{S_STA}, s{S_STA}, s{s+3}'); E.I(f's_add_u32 s{S_STA}, s{S_STA}, s{s}')
    E.I(f's_lshr_b32 s{S_STB}, s{s+1}, 2'); E.I(f's_add_u32 s{S_STB}, s{S_STB}, 16'); E.I(f's_lshl_b32 s{S_STB}, s{S_STB}, 12')
    E.I(f's_and_b32 s{s+3}, s{s+1}, 3'); E.I(f's_lshl_b32 s{s+3}, s{s+3}, 8'); E.I(f's_add_u32 s{S_STB}, s{S_STB}, s{s+3}')
    E.I(f's_lshl_b32 s{s+3}, s{s+2}, 3'); E.I(f's_add_u32 s{S_STB}, s{S_STB}, s{s+3}'); E.I(f's_add_u32 s{S_STB}, s{S_STB}, s{s}')
    E.I(f's_lshl_b32 s{S_FLG}, s{S_RB}, 7'); E.I(f's_add_u32 s{S_FLG}, s{S_FLG}, {WS_FLG}')
    E.I(f'v_and_b32 v{V_FA}, 31, v{l}'); E.I(f'v_lshlrev_b32 v{V_FA}, 2, v{V_FA}')
    E.I(f's_lshl_b32 s{s}, s{S_RB}, 6'); E.I(f's_lshl_b32 s{s+1}, s{S_W}, 4'); E.I(f's_add_u32 s{s}, s{s}, s{s+1}')
    E.I(f's_mul_i32 s{s}, s{s}, 1280'); E.I(f's_mul_i32 s{s+1}, s{S_CB}, 160'); E.I(f's_add_u32 s{s}, s{s}, s{s+1}')
    E.I(f's_mul_i32 s{s+1}, s{S_W}, {16*PITCH}')
    for r in range(3):
        E.I(f'v_add_u32 v{t}, {64*r}, v{l}')
        E.I(f'v_mul_u32_u24 v{t+1}, 6554, v{t}'); E.I(f'v_lshrrev_b32 v{t+1}, 16, v{t+1}')
        E.I(f'v_mul_u32_u24 v{t+2}, 10, v{t+1}'); E.I(f'v_sub_u32 v{t+2}, v{t}, v{t+2}')
        E.I(f'v_mul_u32_u24 v{t+3}, 1280, v{t+1}'); E.I(f'v_lshl_add_u32 v{t+3}, v{t+2}, 4, v{t+3}')
        E.I(f'v_add_u32 v{V_O3+r}, s{s}, v{t+3}')
        if r == 2:
            E.I(f'v_cmp_lt_u32 vcc, 31, v{l}'); E.I(f'v_mov_b32 v{t+3}, {OOB}')
            E.I(f'v_cndmask_b32 v{V_O3+r}, v{V_O3+r}, v{t+3}, vcc')
        E.I(f'v_mul_u32_u24 v{t+3}, {PITCH}, v{t+1}'); E.I(f'v_lshl_add_u32 v{t+3}, v{t+2}, 5, v{t+3}')
        E.I(f'v_add_u32 v{V_R3+r}, s{s+1}, v{t+3}')
    E.I(f's_mul_i32 s{s+1}, s{S_W}, {PART}')
    E.I(f'v_and_b32 v{t}, 15, v{l}'); E.I(f'v_mul_u32_u24 v{t}, {PITCH}, v{t}')
    E.I(f'v_lshrrev_b32 v{t+1}, 4, v{l}'); E.I(f'v_lshl_add_u32 v{t}, v{t+1}, 4, v{t}')
    E.I(f'v_add_u32 v{V_WA}, s{s+1}, v{t}')

def gemm_bases(E):
    s = S_T
    E.I(f's_mul_i32 s{s}, s{S_W}, 14'); E.I(f's_cmp_eq_u32 s{S_W}, 3'); E.I(f's_cselect_b32 s{s+1}, 1, 0'); E.I(f's_sub_u32 s{s}, s{s}, s{s+1}')
    E.I(f's_add_u32 s{s}, s{s}, 20')
    E.I(f's_mul_i32 s{s+2}, s{S_RB}, {NKS}'); E.I(f's_mul_i32 s{s+3}, s{S_CB}, {NKS}')
    E.I(f's_add_u32 s{S_SA}, s{s+2}, s{s}'); E.I(f's_lshl_b32 s{S_SA}, s{S_SA}, 12'); E.I(f's_add_u32 s{S_SA}, s{S_SA}, {WS_ACT}')
    E.I(f's_add_u32 s{S_SW}, s{s+3}, s{s}'); E.I(f's_mul_i32 s{S_SW}, s{S_SW}, 5120'); E.I(f's_add_u32 s{S_SW}, s{S_SW}, {WS_W3}')
    E.I(f's_mul_i32 s{s}, s{S_W}, 5')
    E.I(f's_add_u32 s{S_SAO}, s{s+2}, s{s}'); E.I(f's_lshl_b32 s{S_SAO}, s{S_SAO}, 12'); E.I(f's_add_u32 s{S_SAO}, s{S_SAO}, {WS_ACT}')
    E.I(f's_add_u32 s{S_SWO}, s{s+3}, s{s}'); E.I(f's_mul_i32 s{S_SWO}, s{S_SWO}, 5120'); E.I(f's_add_u32 s{S_SWO}, s{S_SWO}, {WS_W3}')
    E.I(f's_cmp_lt_u32 s{S_W}, 2'); E.I(f's_cselect_b32 s{s}, 0, {OOB}')
    E.I(f'v_or_b32 v{V_L}, s{s}, v{V_A}'); E.I(f'v_or_b32 v{V_L2}, s{s}, v{V_A2}')

def final(E):
    for nt in range(5):
        for tt in range(4):
            d = A_ACC + 4*(nt*4 + tt)
            E.I(f'ds_write_b128 v{V_WA}, {R("a", d, 4)} offset:{tt*16*PITCH + nt*64}')
    E.waitcnt(lg=0); E.I('s_barrier')
    Rr = V_SA
    for r in range(3):
        for pw in range(4):
            for h in range(2):
                q = Rr + 32*r + 8*pw + 4*h
                E.I(f'ds_read_b128 {R("v", q, 4)}, v{V_R3+r} offset:{pw*PART + 16*h}')
    for r in range(3):
        q = Rr + 32*r
        for i in range(8):
            E.I(f'v_add_f32 v{q+i}, v{q+i}, v{q+8+i}')
            E.I(f'v_add_f32 v{q+16+i}, v{q+16+i}, v{q+24+i}')
        for i in range(4):
            E.I(f'v_lshlrev_b32 v{q+8+2*i}, 16, v{V_X+4*r+i}')
            E.I(f'v_and_b32 v{q+9+2*i}, 0xffff0000, v{V_X+4*r+i}')
        for i in range(8):
            E.I(f'v_add_f32 v{q+i}, v{q+i}, v{q+16+i}')
            E.I(f'v_add_f32 v{q+i}, v{q+i}, v{q+8+i}')
        for i in range(4):
            E.I(f'v_cvt_pk_bf16_f32 v{q+8+i}, v{q+2*i}, v{q+2*i+1}')
        E.I(f'buffer_store_dwordx4 {R("v", q+8, 4)}, v{V_O3+r}, s[{S_OUT}:{S_OUT+3}], 0 offen')

def steps(a, b):
    L = []
    for st in range(a, b):
        nx = st + DEPTH - 1
        ld = []
        if nx < NH + NO:
            lw, la = g_loads(nx)
            ld = lw + (la if nx < NH else [])
        L += mix(g_mfmas(st), ld)
    return L

def body(E, slow):
    RA = float(os.environ.get('K23_RATIO', '0.55'))
    gemm_bases(E)
    attn_loads(E)
    for st in range(DEPTH - 1):
        lw, la = g_loads(st)
        for x in lw + la: emit_item(E, x)
    for x in v_loads(): emit_item(E, x)
    setup2(E)
    for i in range(16):
        m = mask_const(i)
        E.I(f's_mov_b32 s{S_MASK+2*i}, {m & 0xffffffff:#x}'); E.I(f's_mov_b32 s{S_MASK+2*i+1}, {m >> 32:#x}')
    for q in range(2): E.I(f'v_and_or_b32 v{V_Q2+2*q}, v{V_HM}, 0x3f80, v{V_Q2+2*q}') if False else None
    E.I(f's_mov_b32 s{S_T}, 0x3f80')
    for q in range(2): E.I(f'v_and_or_b32 v{V_Q2+2*q}, v{V_HM}, s{S_T}, v{V_Q2+2*q}')
    for t in [8, 0, 1, 2, 3, 4, 5, 6, 7, 9]:
        E.I(f'v_and_or_b32 v{V_K2+2*t}, v{V_HM}, s{S_BIAS+t}, v{V_K2+2*t}')
    A = attention(0) + attention(1)
    G = steps(0, NH - 2)
    sim = interleave(E, A, G, RA)
    stamp(E)
    rest = steps(NH - 2, NH)
    pre = G + rest[:10]
    for x in pre: emit_item(E, x)
    E.wait_tag('ost')
    E.I(f'v_mov_b32 v{V_T}, 1'); E.I(f's_lshl_b32 s{S_T}, s{S_HEAD}, 2'); E.I(f's_add_u32 s{S_T}, s{S_T}, s{S_FLG}')
    E.I(f'v_mov_b32 v{V_T+1}, 0')
    E.I(f'buffer_store_dword v{V_T}, v{V_T+1}, {W}, s{S_T} offen sc1')
    for r in range(3):
        E.I(f'buffer_load_dwordx4 {R("v", V_X+4*r, 4)}, v{V_O3+r}, s[{S_X}:{S_X+3}], 0 offen')
    for x in rest[10:]: emit_item(E, x)
    stamp(E)
    E.I(f'buffer_load_dword v{V_FL}, v{V_FA}, {W}, s{S_FLG} offen sc0 sc1')
    E.I(f'v_cmp_ne_u32 vcc, 1, v{V_FL}')
    E.I('s_nop 4'); E.I('s_cbranch_vccnz K23_SPIN')
    E.label('K23_GO')
    slow.append(f'''K23_SPIN:
buffer_load_dword v{V_FL}, v{V_FA}, {W}, s{S_FLG} offen sc0 sc1
s_waitcnt vmcnt(0)
v_cmp_ne_u32 vcc, 1, v{V_FL}
s_nop 4
s_cbranch_vccnz K23_SPIN
s_branch K23_GO
''')
    stamp(E)
    for st in (NH, NH + 1):
        for x in g_loads(st)[1]: emit_item(E, x)
    for st in range(NH, NH + NO):
        nx = st + DEPTH - 1
        ld = []
        if nx < NH + NO:
            lw, la = g_loads(nx); ld = lw + la
        for x in mix(g_mfmas(st), ld): emit_item(E, x)
    stamp(E)
    final(E)

def gen_k23(name):
    E = Emitter()
    E.I('s_cmp_ge_u32 s2, 256'); E.I('s_cbranch_scc1 K23_END'); ts_begin(E, 84, 6)
    E.I(f's_load_dwordx2 s[4:5], s[0:1], {KA_WS}')
    E.I(f's_load_dwordx2 s[6:7], s[0:1], {KA_X}')
    E.I(f's_load_dwordx2 s[34:35], s[0:1], {KA_OUT}')
    setup(E)
    E.waitcnt(lg=0)
    srd(E, S_WS, 4, 5, WS_SIZE); srd(E, S_X, 6, 7, 2048*1280); srd(E, S_OUT, 34, 35, 2048*1280)
    slow = []
    body(E, slow)
    ts_end(E, 3, 4, 5)
    E.I('s_endpgm')
    for s in slow: E.raw(s)
    E.label('K23_END')
    import sys
    from collections import Counter
    print('k23 nops', E.nops, E.count, Counter(w.split('@')[0] for n, w in E.nop_log).most_common(6), file=sys.stderr)
    return kernel_text(name, E.text(), 512, 256)
if __name__ == '__main__':
    print(gen_k23('k23_kernel'))
```

```python
from common import *
from sched import it, emit_item
import os
S_WS=8; S_X=12; S_OUT=16; S_W=20; S_SA=21; S_SW=22; S_SAO=23; S_SWO=24; S_HEAD=25; S_QB=26; S_RB=27; S_CB=28
S_K1=29; S_K2=30; S_VB=31; S_T=32; S_G=36; S_STA=38; S_STB=39; S_MASK=40; S_BIAS=72; S_FLG=82
W = f's[{S_WS}:{S_WS+3}]'
PITCH=336; PART=64*PITCH
LDS_BYTES = 4*PART + 2048
NH = 14; NO = 5
def R(b, n): return f'v[{b}:{b+n-1}]'
def mask_const(i):
    m = 0
    for l in range(64):
        b = 8*(i >> 2) + 4*(l >> 5) + (i & 3)
        if b > (l & 31): m |= 1 << l
    return m

class AT:
    V_A=1; V_AK2=2; V_AV=3; V_HM=4; V_OA=5; V_OB=6; V_M=7
    V_Q1=8; V_Q2=16
    V_Q2B=20
    V_K1=22; V_K2=58
    V_V=76
    V_SA=148; V_SB=164; V_MG=180; V_P=196; V_O=212; V_T=228
    V_PM=248
A = AT
def k1(t): return A.V_K1 + 4*(t % 9)
def k2(t): return A.V_K2 + 2*(t % 9)
def vv(t): return A.V_V + 8*(t % 9)
def S_mfma(q, t, dst, second=False):
    q2 = A.V_Q2B if second else A.V_Q2 + 2*q
    return [it(f'v_mfma_f32_32x32x16_bf16 {R(dst,16)}, {R(k1(t),4)}, {R(A.V_Q1+4*q,4)}, 0'),
            it(f'v_mfma_f32_32x32x8_bf16 {R(dst,16)}, {R(k2(t),2)}, {R(q2,2)}, {R(dst,16)}')]
def maxes(src, first=False):
    m0, m1 = A.V_T, A.V_T+1; L = []; st = 0
    if first:
        L += [it(f'v_max_f32 v{m0}, v{src}, v{src+1}'), it(f'v_max_f32 v{m1}, v{src+2}, v{src+3}')]; st = 4
    for k, i in enumerate(range(st, 16, 2)):
        m = m0 if k % 2 == 0 else m1
        L.append(it(f'v_max3_f32 v{m}, v{src+i}, v{src+i+1}, v{m}'))
    return L
def PV(t, P, first=False):
    L = []
    for s in range(2):
        C = '0' if (first and s == 0) else R(A.V_O, 16)
        L.append(it(f'v_mfma_f32_32x32x16_bf16 {R(A.V_O,16)}, {R(vv(t)+4*s,4)}, {R(P+4*s,4)}, {C}'))
    return L
def exps(S): return [it(f'v_exp_f32 v{S+i}, v{S+i}') for i in range(16)]
def cvts(S, P): return [it(f'v_cvt_pk_bf16_f32 v{P+i}, v{S+2*i}, v{S+2*i+1}') for i in range(8)]
def weave(a, b):
    out = []; n = len(a)
    if n == 0: return list(b)
    step = len(b) / n; j = 0
    for i, m in enumerate(a):
        out.append(m); k = int(round((i + 1) * step)); out += b[j:k]; j = k
    return out + b[j:]
def k_load(t):
    return [it(f's_add_i32 s{S_T}, s{S_QB}, {t-8}'), it(f's_cmp_lt_i32 s{S_T}, 0'), it(f's_cselect_b32 s{S_BIAS+t}, s3, s4'),
            it(f's_max_i32 s{S_T}, s{S_T}, 0'),
            it(f's_lshl_b32 s{S_T+1}, s{S_T}, 10'), it(f's_add_u32 s{S_T+1}, s{S_T+1}, s{S_K1}'),
            it(f'buffer_load_dwordx4 {R(k1(t),4)}, v{A.V_A}, {W}, s{S_T+1} offen'),
            it(f's_lshl_b32 s{S_T+2}, s{S_T}, 8'), it(f's_add_u32 s{S_T+2}, s{S_T+2}, s{S_K2}'),
            it(f'buffer_load_dwordx2 {R(k2(t),2)}, v{A.V_AK2}, {W}, s{S_T+2} offen')]
def k_fix(t):
    return [it(f'v_and_or_b32 v{k2(t)}, v{A.V_HM}, s{S_BIAS+t}, v{k2(t)}'),
            it(f'v_and_or_b32 v{k2(t)+1}, v{A.V_HM}, s5, v{k2(t)+1}')]
def v_load(t):
    L = [it(f's_add_i32 s{S_T+2}, s{S_QB}, {t-8}'), it(f's_max_i32 s{S_T+2}, s{S_T+2}, 0'),
         it(f's_mul_i32 s{S_T+3}, s{S_T+2}, {VT}'), it(f's_add_u32 s{S_T+3}, s{S_T+3}, s{S_VB}')]
    for s in range(2):
        L.append(it(f'buffer_load_dwordx4 {R(vv(t)+4*s,4)}, v{A.V_AV}, {W}, s{S_T+3} offen offset:{672*s}'))
    return L
def attention(q):
    T = lambda t: q + t
    SA, SB, SC, MG, P, O, VT_ = A.V_SA, A.V_SB, A.V_P, A.V_MG, A.V_P, A.V_O, A.V_T
    L = []
    L += S_mfma(q, T(8), SA) + S_mfma(q, T(0), SB) + S_mfma(q, T(1), SC)
    L += [it(f'v_cndmask_b32 v{MG+i}, v{SA+i}, v{SB+i}, s[{S_MASK+2*i}:{S_MASK+2*i+1}]') for i in range(16)]
    if q == 0: L += k_load(9)
    L += weave(S_mfma(q, T(2), SA), maxes(MG, first=True))
    bufs = [SC, SA, SB]
    for t in range(1, 8):
        nx = S_mfma(q, T(t + 2), bufs[(t + 1) % 3]) if t + 2 <= 7 else []
        L += weave(nx, maxes(bufs[(t - 1) % 3]))
    m0, m1 = VT_, VT_+1
    L += [it(f'v_max_f32 v{m0}, v{m0}, v{m1}'), it(f'v_mov_b32 v{m1}, v{m0}'), it(f'v_permlane32_swap_b32 v{m0}, v{m1}'),
          it(f'v_max_f32 v{A.V_M}, v{m0}, v{m1}')]
    h, lo = VT_+2, VT_+3
    L += [it(f'v_cvt_pk_bf16_f32 v{h}, v{A.V_M}, v{A.V_M}'),
          it(f'v_and_b32 v{lo}, 0xffff0000, v{h}'),
          it(f'v_sub_f32 v{lo}, v{lo}, v{A.V_M}'),
          it(f'v_cvt_pk_bf16_f32 v{lo}, v{lo}, 0'),
          it(f'v_and_b32 v{h}, 0xffff0000, v{h}'), it(f'v_xor_b32 v{h}, 0x80000000, v{h}'),
          it(f'v_or_b32 v{h}, 0x3f80, v{h}'),
          it(f'v_cndmask_b32 v{A.V_Q2B}, v{A.V_Q2+2*q}, v{h}, s[6:7]'),
          it(f'v_cndmask_b32 v{A.V_Q2B+1}, v{A.V_Q2+2*q+1}, v{lo}, s[6:7]')]
    a = [it(f'v_sub_f32 v{MG+i}, v{MG+i}, v{A.V_M}') for i in range(16)] + exps(MG)
    L += a[:8]
    L += weave(S_mfma(q, T(1), SA, True) + S_mfma(q, T(2), SB, True), a[8:])
    P0, P1 = P, P + 8
    L += cvts(MG, MG)
    for i in range(8):
        L += [it(f'v_and_b32 v{P0+i}, v{MG+i}, v{A.V_PM+i}'), it(f'v_xor_b32 v{P1+i}, v{MG+i}, v{P0+i}')]
    pend = PV(T(0), P0, first=True) + PV(T(8), P1)
    sb = [SA, SB]; pb = [P, P + 8]
    for t in range(1, 8):
        S = sb[(t - 1) % 2]; Pp = pb[(t - 1) % 2]
        L += weave(pend, exps(S))
        if t == 1 and q == 0: L += v_load(9)
        L += cvts(S, Pp)
        pend = (S_mfma(q, T(t + 2), S, True) if t + 2 <= 7 else []) + PV(T(t), Pp)
    L += pend
    if q == 0: L += k_fix(9)
    t = VT_ + 6
    L += [it(f'v_mov_b32 v{t}, v{O+8}'), it(f'v_mov_b32 v{t+1}, v{O+8}'), it(f'v_permlane32_swap_b32 v{t}, v{t+1}'),
          it(f'v_rcp_f32 v{t}, v{t+1}')]
    L += [it(f'v_mul_f32 v{O+i}, v{O+i}, v{t}') for i in range(12)]
    D = VT_ + 8
    L += [it(f'v_cvt_pk_bf16_f32 v{D+i}, v{O+2*i}, v{O+2*i+1}') for i in range(6)]
    L += [it(f's_add_u32 s{S_T}, s{S_STA}, {q*2048}'),
          it(f'buffer_store_dwordx4 {R(D,4)}, v{A.V_OA}, {W}, s{S_T} offen sc1', tag='ost'),
          it(f's_add_u32 s{S_T+1}, s{S_STB}, {q*2048}'),
          it(f'buffer_store_dwordx2 {R(D+4,2)}, v{A.V_OB}, {W}, s{S_T+1} offen sc1', tag='ost')]
    return L

def attn_wave(E):
    l = A.V_T
    E.I(f's_setprio {os.environ.get("K23_PRIO", "3")}')
    E.I(f's_lshl_b32 s{S_HEAD}, s{S_CB}, 2'); E.I(f's_add_u32 s{S_HEAD}, s{S_HEAD}, s{S_W}'); E.I(f's_sub_u32 s{S_HEAD}, s{S_HEAD}, 4')
    E.I(f's_lshl_b32 s{S_QB}, s{S_RB}, 1')
    E.I(f'v_and_b32 v{l}, 63, v0'); E.I(f'v_lshlrev_b32 v{A.V_A}, 4, v{l}')
    E.I(f'v_and_b32 v{l+1}, 31, v{l}'); E.I(f'v_lshrrev_b32 v{l+2}, 5, v{l}')
    E.I(f'v_lshlrev_b32 v{A.V_AK2}, 3, v{l+1}'); E.I(f'v_lshl_or_b32 v{A.V_AK2}, v{l+2}, 31, v{A.V_AK2}')
    E.I(f's_lshl_b32 s{S_T}, s{S_HEAD}, 16'); E.I(f's_lshl_b32 s{S_T+1}, s{S_QB}, 10'); E.I(f's_add_u32 s{S_T+1}, s{S_T+1}, s{S_T}')
    E.I(f's_add_u32 s{S_T+1}, s{S_T+1}, {WS_QF1}')
    for q in range(2): E.I(f'buffer_load_dwordx4 {R(A.V_Q1+4*q,4)}, v{A.V_A}, {W}, s{S_T+1} offen offset:{1024*q}')
    E.I(f's_add_u32 s{S_K1}, s{S_T}, {WS_KF1}')
    E.I(f's_lshl_b32 s{S_T}, s{S_HEAD}, 14'); E.I(f's_lshl_b32 s{S_T+1}, s{S_QB}, 8'); E.I(f's_add_u32 s{S_T+1}, s{S_T+1}, s{S_T}')
    E.I(f's_add_u32 s{S_T+1}, s{S_T+1}, {WS_QF2}')
    for q in range(2): E.I(f'buffer_load_dwordx2 {R(A.V_Q2+2*q,2)}, v{A.V_AK2}, {W}, s{S_T+1} offen offset:{256*q}')
    E.I(f's_add_u32 s{S_K2}, s{S_T}, {WS_KF2}')
    E.I('s_mov_b32 s3, 0x3f80f149'); E.I('s_mov_b32 s4, 0x3f800000'); E.I('s_mov_b32 s5, 0x00003f80')
    E.I('s_mov_b32 s6, 0'); E.I('s_mov_b32 s7, -1')
    for t in [8, 0, 1, 2, 3, 4, 5, 6, 7]:
        for x in k_load(t): emit_item(E, x)
    E.I(f'v_mul_u32_u24 v{A.V_AV}, 336, v{l+2}'); E.I(f'v_lshl_add_u32 v{A.V_AV}, v{l+1}, 4, v{A.V_AV}')
    E.I(f'v_cmp_lt_u32 vcc, 20, v{l+1}'); E.I(f'v_mov_b32 v{l+3}, {OOB}')
    E.I(f'v_cndmask_b32 v{A.V_AV}, v{A.V_AV}, v{l+3}, vcc')
    E.I(f's_mul_i32 s{S_VB}, s{S_HEAD}, {VH}'); E.I(f's_add_u32 s{S_VB}, s{S_VB}, {WS_VF}')
    for t in [0, 8, 1, 2, 3, 4, 5, 6, 7]:
        for x in v_load(t): emit_item(E, x)
    E.I(f'v_sub_u32 v{A.V_HM}, 0, v{l+2}')
    t = l + 4
    E.I(f'v_bfe_u32 v{A.V_OB}, v{l}, 4, 1'); E.I(f'v_lshlrev_b32 v{A.V_OB}, 10, v{A.V_OB}')
    E.I(f'v_and_b32 v{t}, 15, v{l}'); E.I(f'v_lshl_add_u32 v{A.V_OB}, v{t}, 4, v{A.V_OB}')
    E.I(f'v_lshl_add_u32 v{A.V_OA}, v{l+2}, 8, v{A.V_OB}')
    E.I(f'v_lshl_or_b32 v{A.V_OB}, v{l+2}, 31, v{A.V_OB}')
    s = S_T
    E.I(f's_mul_i32 s{s}, s{S_RB}, {NKS*4096}'); E.I(f's_add_u32 s{s}, s{s}, {WS_ACT}')
    E.I(f's_lshr_b32 s{s+1}, s{S_HEAD}, 1'); E.I(f's_and_b32 s{s+2}, s{S_HEAD}, 1')
    E.I(f's_lshl_b32 s{S_STA}, s{s+1}, 12'); E.I(f's_lshl_b32 s{s+3}, s{s+2}, 9')
    E.I(f's_add_u32 s{S_STA}, s{S_STA}, s{s+3}'); E.I(f's_add_u32 s{S_STA}, s{S_STA}, s{s}')
    E.I(f's_lshr_b32 s{S_STB}, s{s+1}, 2'); E.I(f's_add_u32 s{S_STB}, s{S_STB}, 16'); E.I(f's_lshl_b32 s{S_STB}, s{S_STB}, 12')
    E.I(f's_and_b32 s{s+3}, s{s+1}, 3'); E.I(f's_lshl_b32 s{s+3}, s{s+3}, 8'); E.I(f's_add_u32 s{S_STB}, s{S_STB}, s{s+3}')
    E.I(f's_lshl_b32 s{s+3}, s{s+2}, 3'); E.I(f's_add_u32 s{S_STB}, s{S_STB}, s{s+3}'); E.I(f's_add_u32 s{S_STB}, s{S_STB}, s{s}')
    E.I(f's_lshl_b32 s{S_FLG}, s{S_RB}, 7'); E.I(f's_add_u32 s{S_FLG}, s{S_FLG}, {WS_FLG}')
    E.I(f's_lshl_b32 s{s}, s{S_HEAD}, 2'); E.I(f's_add_u32 s{S_FLG}, s{S_FLG}, s{s}')
    for i in range(16):
        m = mask_const(i)
        E.I(f's_mov_b32 s{S_MASK+2*i}, {m & 0xffffffff:#x}'); E.I(f's_mov_b32 s{S_MASK+2*i+1}, {m >> 32:#x}')
    E.I(f'v_mov_b32 v{l+5}, 0xffff0000')
    for i in range(8):
        E.I(f'v_cndmask_b32 v{A.V_PM+i}, 0, v{l+5}, s[{S_MASK+4*i+2}:{S_MASK+4*i+3}]')
        E.I(f'v_cndmask_b32 v{A.V_PM+i}, v{A.V_PM+i}, -1, s[{S_MASK+4*i}:{S_MASK+4*i+1}]')
    E.I(f's_mov_b32 s{S_T}, 0x3f80')
    for q in range(2): E.I(f'v_and_or_b32 v{A.V_Q2+2*q}, v{A.V_HM}, s{S_T}, v{A.V_Q2+2*q}')
    for t in [8, 0, 1, 2, 3, 4, 5, 6, 7]:
        for x in k_fix(t): emit_item(E, x)
    stamp(E)
    for q in range(2):
        for x in attention(q): emit_item(E, x)
        stamp(E)
    E.wait_tag('ost')
    E.I(f'v_mov_b32 v{A.V_T}, 1'); E.I(f'v_mov_b32 v{A.V_T+1}, 0')
    E.I(f'buffer_store_dword v{A.V_T}, v{A.V_T+1}, {W}, s{S_FLG} offen sc1')

class GM:
    DEPTH=4
    V_A=1; V_A2=2; V_L=3; V_L2=4; V_O3=5; V_FA=8; V_FL=9; V_R3=10; V_WA=13
    V_B=16; V_ACC=16+4*36; V_X=V_ACC+80; V_T=V_X+12
G = GM
def g_loads(st):
    b = G.V_B + 36*(st % G.DEPTH)
    va, va2 = (G.V_L, G.V_L2) if st == NH-1 else (G.V_A, G.V_A2)
    if st < NH: sa, sw, k = S_SA, S_SW, st
    else: sa, sw, k = S_SAO, S_SWO, st - NH
    LW = [it(f's_add_u32 s{S_G+1}, s{sw}, {k*5120}')]
    for i in range(4): LW.append(it(f'buffer_load_dwordx4 {R(b+16+4*i,4)}, v{va}, {W}, s{S_G+1} offen offset:{1024*i}'))
    LW.append(it(f'buffer_load_dwordx4 {R(b+32,4)}, v{va2}, {W}, s{S_G+1} offen'))
    LA = [it(f's_add_u32 s{S_G}, s{sa}, {k*4096}')]
    for i in range(4): LA.append(it(f'buffer_load_dwordx4 {R(b+4*i,4)}, v{va}, {W}, s{S_G} offen offset:{1024*i}'))
    return LW, LA
def g_mfmas(st):
    b = G.V_B + 36*(st % G.DEPTH); L = []
    for nt in range(5):
        for tt in range(4):
            d = G.V_ACC + 4*(nt*4 + tt)
            C = '0' if st == 0 else R(d, 4)
            L.append(it(f'v_mfma_f32_16x16x32_bf16 {R(d,4)}, {R(b+16+4*nt,4)}, {R(b+4*tt,4)}, {C}'))
    return L
def mix(mf, ld):
    out = []; ld = list(ld)
    for i, m in enumerate(mf):
        out.append(m)
        if ld and i % 2 == 0:
            x = ld.pop(0); out.append(x)
            while x.text.startswith('s_') and ld:
                x = ld.pop(0); out.append(x)
    return out + ld
def gemm_wave(E, slow):
    l = 252; s = S_T; t = 248
    E.I(f'v_and_b32 v{l}, 63, v0')
    E.I(f'v_lshlrev_b32 v{G.V_A}, 4, v{l}'); E.I(f'v_add_u32 v{G.V_A2}, 4096, v{G.V_A}')
    E.I(f's_mul_i32 s{s}, s{S_W}, 14'); E.I(f's_cmp_eq_u32 s{S_W}, 3'); E.I(f's_cselect_b32 s{s+1}, 1, 0'); E.I(f's_sub_u32 s{s}, s{s}, s{s+1}')
    E.I(f's_add_u32 s{s}, s{s}, 20')
    E.I(f's_mul_i32 s{s+2}, s{S_RB}, {NKS}'); E.I(f's_mul_i32 s{s+3}, s{S_CB}, {NKS}')
    E.I(f's_add_u32 s{S_SA}, s{s+2}, s{s}'); E.I(f's_lshl_b32 s{S_SA}, s{S_SA}, 12'); E.I(f's_add_u32 s{S_SA}, s{S_SA}, {WS_ACT}')
    E.I(f's_add_u32 s{S_SW}, s{s+3}, s{s}'); E.I(f's_mul_i32 s{S_SW}, s{S_SW}, 5120'); E.I(f's_add_u32 s{S_SW}, s{S_SW}, {WS_W3}')
    DP = G.DEPTH
    for st in range(DP - 1):
        lw, la = g_loads(st)
        for x in la + lw: emit_item(E, x)
    E.I(f's_mul_i32 s{s}, s{S_W}, 5')
    E.I(f's_add_u32 s{S_SAO}, s{s+2}, s{s}'); E.I(f's_lshl_b32 s{S_SAO}, s{S_SAO}, 12'); E.I(f's_add_u32 s{S_SAO}, s{S_SAO}, {WS_ACT}')
    E.I(f's_add_u32 s{S_SWO}, s{s+3}, s{s}'); E.I(f's_mul_i32 s{S_SWO}, s{S_SWO}, 5120'); E.I(f's_add_u32 s{S_SWO}, s{S_SWO}, {WS_W3}')
    E.I(f's_cmp_lt_u32 s{S_W}, 2'); E.I(f's_cselect_b32 s{s}, 0, {OOB}')
    E.I(f'v_or_b32 v{G.V_L}, s{s}, v{G.V_A}'); E.I(f'v_or_b32 v{G.V_L2}, s{s}, v{G.V_A2}')
    E.I(f's_lshl_b32 s{S_FLG}, s{S_RB}, 7'); E.I(f's_add_u32 s{S_FLG}, s{S_FLG}, {WS_FLG}')
    E.I(f'v_and_b32 v{G.V_FA}, 31, v{l}'); E.I(f'v_lshlrev_b32 v{G.V_FA}, 2, v{G.V_FA}')
    E.I(f's_lshl_b32 s{s}, s{S_RB}, 6'); E.I(f's_lshl_b32 s{s+1}, s{S_W}, 4'); E.I(f's_add_u32 s{s}, s{s}, s{s+1}')
    E.I(f's_mul_i32 s{s}, s{s}, 1280'); E.I(f's_mul_i32 s{s+1}, s{S_CB}, 160'); E.I(f's_add_u32 s{s}, s{s}, s{s+1}')
    E.I(f's_mul_i32 s{s+1}, s{S_W}, {16*PITCH}')
    for r in range(3):
        E.I(f'v_add_u32 v{t}, {64*r}, v{l}')
        E.I(f'v_mul_u32_u24 v{t+1}, 6554, v{t}'); E.I(f'v_lshrrev_b32 v{t+1}, 16, v{t+1}')
        E.I(f'v_mul_u32_u24 v{t+2}, 10, v{t+1}'); E.I(f'v_sub_u32 v{t+2}, v{t}, v{t+2}')
        E.I(f'v_mul_u32_u24 v{t+3}, 1280, v{t+1}'); E.I(f'v_lshl_add_u32 v{t+3}, v{t+2}, 4, v{t+3}')
        E.I(f'v_add_u32 v{G.V_O3+r}, s{s}, v{t+3}')
        if r == 2:
            E.I(f'v_cmp_lt_u32 vcc, 31, v{l}'); E.I(f'v_mov_b32 v{t+3}, {OOB}')
            E.I(f'v_cndmask_b32 v{G.V_O3+r}, v{G.V_O3+r}, v{t+3}, vcc')
        E.I(f'v_mul_u32_u24 v{t+3}, {PITCH}, v{t+1}'); E.I(f'v_lshl_add_u32 v{t+3}, v{t+2}, 5, v{t+3}')
        E.I(f'v_add_u32 v{G.V_R3+r}, s{s+1}, v{t+3}')
    E.I(f's_mul_i32 s{s+1}, s{S_W}, {PART}')
    E.I(f'v_and_b32 v{t}, 15, v{l}'); E.I(f'v_mul_u32_u24 v{t}, {PITCH}, v{t}')
    E.I(f'v_lshrrev_b32 v{t+1}, 4, v{l}'); E.I(f'v_lshl_add_u32 v{t}, v{t+1}, 4, v{t}')
    E.I(f'v_add_u32 v{G.V_WA}, s{s+1}, v{t}')
    for r in range(3):
        E.I(f'buffer_load_dwordx4 {R(G.V_X+4*r,4)}, v{G.V_O3+r}, s[{S_X}:{S_X+3}], 0 offen')
    stamp(E)
    F = int(os.environ.get('K23_F', '12'))
    deferred = []
    for st in range(NH + NO):
        nx = st + DP - 1
        ld = []
        if nx < NH + NO:
            lw, la = g_loads(nx)
            if nx >= NH and st < F: deferred += la; ld = lw
            else: ld = lw + la
        if st == F:
            stamp(E)
            E.I(f'v_cmp_ne_u32 vcc, 1, v{G.V_FL}')
            E.I('s_nop 4'); E.I('s_cbranch_vccnz K23_SPIN')
            E.label('K23_GO')
            stamp(E)
            ld = deferred + ld; deferred = []
        if st == F - 1:
            E.I(f'buffer_load_dword v{G.V_FL}, v{G.V_FA}, {W}, s{S_FLG} offen sc0 sc1')
        for x in mix(g_mfmas(st), ld): emit_item(E, x)
    slow.append(f'''K23_SPIN:
buffer_load_dword v{G.V_FL}, v{G.V_FA}, {W}, s{S_FLG} offen sc0 sc1
s_waitcnt vmcnt(0)
v_cmp_ne_u32 vcc, 1, v{G.V_FL}
s_nop 4
s_cbranch_vccnz K23_SPIN
s_branch K23_GO
''')
    stamp(E)
    for nt in range(5):
        for tt in range(4):
            d = G.V_ACC + 4*(nt*4 + tt)
            E.I(f'ds_write_b128 v{G.V_WA}, {R(d,4)} offset:{tt*16*PITCH + nt*64}')
    E.waitcnt(lg=0); E.I('s_barrier')
    Rr = G.V_B
    for r in range(3):
        for pw in range(4):
            for h in range(2):
                q = Rr + 32*r + 8*pw + 4*h
                E.I(f'ds_read_b128 {R(q,4)}, v{G.V_R3+r} offset:{pw*PART + 16*h}')
    for r in range(3):
        q = Rr + 32*r
        for i in range(8):
            E.I(f'v_add_f32 v{q+i}, v{q+i}, v{q+8+i}')
            E.I(f'v_add_f32 v{q+16+i}, v{q+16+i}, v{q+24+i}')
        for i in range(4):
            E.I(f'v_lshlrev_b32 v{q+8+2*i}, 16, v{G.V_X+4*r+i}')
            E.I(f'v_and_b32 v{q+9+2*i}, 0xffff0000, v{G.V_X+4*r+i}')
        for i in range(8):
            E.I(f'v_add_f32 v{q+i}, v{q+i}, v{q+16+i}')
            E.I(f'v_add_f32 v{q+i}, v{q+i}, v{q+8+i}')
        for i in range(4):
            E.I(f'v_cvt_pk_bf16_f32 v{q+8+i}, v{q+2*i}, v{q+2*i+1}')
        E.I(f'buffer_store_dwordx4 {R(q+8,4)}, v{G.V_O3+r}, s[{S_OUT}:{S_OUT+3}], 0 offen' + os.environ.get('K3_SC', ''))

def gen_k23b(name):
    E = Emitter()
    E.I('s_cmp_ge_u32 s2, 256'); E.I('s_cbranch_scc1 K23_END'); ts_begin(E, 84, 6)
    E.I(f's_load_dwordx2 s[4:5], s[0:1], {KA_WS}')
    E.I(f's_load_dwordx2 s[6:7], s[0:1], {KA_X}')
    E.I(f's_load_dwordx2 s[34:35], s[0:1], {KA_OUT}')
    E.I(f'v_lshrrev_b32 v1, 6, v0'); E.I(f'v_readfirstlane_b32 s{S_W}, v1')
    E.I('s_and_b32 s36, s2, 7'); E.I('s_lshr_b32 s37, s2, 3')
    E.I(f's_and_b32 s38, s36, 3'); E.I('s_lshl_b32 s38, s38, 3'); E.I('s_and_b32 s39, s37, 7'); E.I(f's_add_u32 s{S_RB}, s38, s39')
    E.I('s_lshr_b32 s38, s36, 2'); E.I('s_lshl_b32 s38, s38, 2'); E.I('s_lshr_b32 s39, s37, 3'); E.I(f's_add_u32 s{S_CB}, s38, s39')
    E.waitcnt(lg=0)
    srd(E, S_WS, 4, 5, WS_SIZE); srd(E, S_X, 6, 7, 2048*1280); srd(E, S_OUT, 34, 35, 2048*1280)
    E.I(f's_cmp_ge_u32 s{S_W}, 4'); E.I('s_cbranch_scc1 K23_ATT')
    slow = []
    gemm_wave(E, slow)
    ts_end(E, 3)
    E.I('s_endpgm')
    for s in slow: E.raw(s)
    n1 = E.nops
    E.label('K23_ATT'); E.reset_state(); E.nstamp = 1
    E.I('s_nop 4')
    attn_wave(E)
    ts_end(E, 3)
    E.label('K23_END')
    import sys
    from collections import Counter
    print('k23b nops', n1, E.nops - n1, E.count, Counter(w.split('@')[0] for n, w in E.nop_log).most_common(6), file=sys.stderr)
    return kernel_text(name, E.text(), 256, 256)
if __name__ == '__main__':
    print(gen_k23b('k23_kernel'))
```

```python
from emit import parse
def icost(text):
    mn = text.split()[0]
    if mn.startswith('v_mfma'): return 8
    if mn.startswith(('v_exp','v_rcp','v_rsq','v_log','v_sqrt')): return 8
    if mn.startswith('buffer_') or mn.startswith('global_'): return 16
    if mn.startswith('ds_'): return 8
    if mn.startswith('s_'): return 4
    return 4
def pipe(text):
    mn = text.split()[0]
    if not mn.startswith('v_mfma'): return 0
    return 16 if '16x16x32' in mn else 32

class Item:
    __slots__ = ('text', 'tag', 'fn')
    def __init__(self, text=None, tag=None, fn=None): self.text = text; self.tag = tag; self.fn = fn
def it(text, tag=None): return Item(text, tag)
def call(fn): return Item(None, None, fn)

class Sim:
    def __init__(self): self.t = 0; self.pf = 0
    def stall(self, text):
        return max(0, self.pf - self.t) if pipe(text) else 0
    def step(self, text):
        p = pipe(text)
        if p:
            s = max(self.t, self.pf); self.t = s + 8; self.pf = s + p
        else: self.t += icost(text)

def emit_item(E, x, sim=None):
    if x.fn is not None: x.fn(E); return 0
    n0 = E.nops
    E.I(x.text, tag=x.tag)
    if sim is not None:
        sim.t += 2 * (E.nops - n0)
        sim.step(x.text)
    return icost(x.text)

def interleave(E, A, G, ratio, sim=None, slack=160):
    sim = sim or Sim()
    ca = cg = 0.0
    while A:
        a = A[0]; g = G[0] if G else None
        want_g = g is not None and cg < ratio * ca
        def pen(x):
            if x is None: return 1e9
            if x.fn is not None: return 0
            I = parse(x.text)
            n, _ = E.need(I)
            return 2 * n + sim.stall(x.text)
        pa, pg = pen(a), pen(g)
        if want_g:
            pick_g = not (pg > pa and ca - cg / ratio < slack) if ratio > 0 else False
            if g.fn is not None: pick_g = True
        else:
            pick_g = g is not None and pg < pa and cg < ratio * ca + slack
        if pick_g:
            cg += emit_item(E, G.pop(0), sim)
        else:
            ca += emit_item(E, A.pop(0), sim)
    return sim
```

```python
from common import *
import os
def gen_k0(name='k0_kernel'):
    E = Emitter()
    E.I('s_cmp_ge_u32 s2, 996'); E.I('s_cbranch_scc1 K0_END'); ts_begin(E)
    E.I('s_load_dwordx2 s[4:5], s[0:1], %d' % KA_X)
    E.I('s_load_dwordx2 s[6:7], s[0:1], %d' % KA_WS)
    E.I('s_load_dwordx2 s[20:21], s[0:1], %d' % KA_WO)
    E.I('s_load_dwordx2 s[22:23], s[0:1], %d' % KA_WD)
    E.waitcnt(lg=0)
    srd(E, 8, 4, 5, 2048*1280)
    srd(E, 12, 6, 7, WS_SIZE)
    E.I('s_cmp_ge_u32 s2, 256'); E.I('s_cbranch_scc1 K0_W3')
    E.I('s_cmp_lg_u32 s2, 0'); E.I('s_cbranch_scc1 K0_LN')
    E.I('v_lshlrev_b32 v1, 4, v0'); E.I(f'v_add_u32 v1, {WS_FLG}, v1')
    for i in range(4): E.I(f'v_mov_b32 v{10+i}, 0')
    E.I('buffer_store_dwordx4 v[10:13], v1, s[12:15], 0 offen')
    E.label('K0_LN')
    if os.environ.get('K0_PF', '1') == '1':
        E.I('s_load_dwordx2 s[24:25], s[0:1], %d' % KA_WQKV)
        E.I('s_load_dwordx4 s[28:31], s[0:1], %d' % KA_WG)
        E.waitcnt(lg=0)
        srd(E, 32, 24, 25, 640*3840)
        srd(E, 36, 28, 29, 640*3456)
        srd(E, 40, 30, 31, 640*3456)
        E.I('v_mov_b32 v44, 0x80000000')
        E.I('s_mul_i32 s44, s2, 75'); E.I('v_add_lshl_u32 v41, s44, v0, 7')
        E.I('v_cmp_gt_u32 vcc, 75, v0'); E.I('v_cndmask_b32 v41, v44, v41, vcc')
        E.I('s_mul_i32 s44, s2, 68'); E.I('v_add_lshl_u32 v42, s44, v0, 7')
        E.I('v_cmp_gt_u32 vcc, 68, v0'); E.I('v_cndmask_b32 v42, v44, v42, vcc')
    E.I('v_lshrrev_b32 v1, 6, v0'); E.I('v_and_b32 v2, 63, v0')
    E.I('v_readfirstlane_b32 s16, v1')
    E.I('s_lshl_b32 s17, s2, 3'); E.I('s_lshl_b32 s18, s16, 1'); E.I('s_add_u32 s17, s17, s18')
    E.I('v_lshlrev_b32 v3, 2, v2')
    for rr in range(2):
        E.I(f's_add_u32 s18, s17, {rr}'); E.I('s_mul_i32 s19, s18, 1280')
        for i in range(5):
            E.I(f'buffer_load_dword v{10+i}, v3, s[8:11], s19 offen offset:{256*i}')
        if rr == 0 and os.environ.get('K0_PF', '1') == '1':
            E.I('buffer_load_dword v45, v41, s[32:35], 0 offen')
            E.I('buffer_load_dword v46, v42, s[36:39], 0 offen')
            E.I('buffer_load_dword v47, v42, s[40:43], 0 offen')
        for i in range(5):
            E.I(f'v_lshlrev_b32 v{20+2*i}, 16, v{10+i}')
            E.I(f'v_and_b32 v{21+2*i}, 0xffff0000, v{10+i}')
        E.I('v_add_f32 v4, v20, v21')
        for i in range(2, 10): E.I(f'v_add_f32 v4, v4, v{20+i}')
        wavesum(E, 4, 5)
        E.I('v_mul_f32 v4, 0x3acccccd, v4')
        for i in range(10): E.I(f'v_sub_f32 v{20+i}, v{20+i}, v4')
        E.I('v_mul_f32 v6, v20, v20')
        for i in range(1, 10): E.I(f'v_fmac_f32 v6, v{20+i}, v{20+i}')
        wavesum(E, 6, 5)
        E.I('v_mov_b32 v7, 0x3727c5ac')
        E.I('v_fmac_f32 v7, 0x3acccccd, v6')
        E.I('v_rsq_f32 v7, v7')
        for i in range(10): E.I(f'v_mul_f32 v{20+i}, v{20+i}, v7')
        for i in range(5):
            E.I(f'v_cvt_pk_bf16_f32 v{10+i}, v{20+2*i}, v{21+2*i}')
        for i in range(5):
            E.I(f'buffer_store_dword v{10+i}, v3, s[12:15], s19 offen offset:{256*i}' + os.environ.get('K0_SC', ' sc1'))
        E.waitcnt(vm=0)
    E.waitcnt(vm=0)
    ts_end(E, 0, 6, 7)
    E.I('s_endpgm')
    E.label('K0_W3')
    E.reset_state()
    E.I('s_sub_u32 s16, s2, 256')
    E.I('s_mul_hi_u32 s17, s16, 0x1999999a')
    E.I('s_mul_i32 s18, s17, 10'); E.I('s_sub_u32 s18, s16, s18')
    E.I('s_lshl_b32 s18, s18, 8')
    E.I('v_add_u32 v1, s18, v0')
    E.I('v_lshrrev_b32 v2, 6, v1')
    E.I('v_and_b32 v3, 63, v1')
    E.I('v_and_b32 v4, 15, v3')
    E.I('v_lshl_add_u32 v4, v2, 4, v4')
    E.I('v_lshrrev_b32 v5, 4, v3')
    E.I('v_mul_u32_u24 v6, 52, v2'); E.I('v_lshrrev_b32 v6, 8, v6')
    E.I('v_mul_u32_u24 v7, 5, v6'); E.I('v_sub_u32 v7, v2, v7')
    E.I('v_mul_u32_u24 v8, 74, v6'); E.I('v_add_u32 v8, s17, v8')
    E.I('v_mul_u32_u24 v8, 5, v8'); E.I('v_add_u32 v8, v8, v7')
    E.I('v_lshlrev_b32 v8, 10, v8'); E.I('v_lshl_add_u32 v8, v3, 4, v8')
    E.I(f'v_add_u32 v8, {WS_W3}, v8')
    E.I('s_cmp_ge_u32 s17, 20'); E.I('s_cbranch_scc1 K0_WD')
    srd(E, 24, 20, 21, 640*1280)
    E.I('s_cmp_ge_u32 s17, 16'); E.I('s_cbranch_scc1 K0_WO2')
    E.I('v_lshrrev_b32 v9, 1, v5'); E.I('s_lshl_b32 s18, s17, 1'); E.I('v_add_u32 v9, s18, v9')
    E.I('v_mul_u32_u24 v9, 20, v9'); E.I('v_and_b32 v10, 1, v5'); E.I('v_lshl_add_u32 v9, v10, 2, v9')
    E.I('s_mov_b32 s19, 8')
    E.I('s_branch K0_GO')
    E.label('K0_WO2')
    E.I('s_sub_u32 s18, s17, 16'); E.I('s_lshl_b32 s18, s18, 2'); E.I('v_add_u32 v9, s18, v5')
    E.I('v_mul_u32_u24 v9, 40, v9'); E.I('v_add_u32 v9, 16, v9')
    E.I('s_mov_b32 s19, 20')
    E.I('s_branch K0_GO')
    E.label('K0_WD')
    srd(E, 24, 22, 23, 1728*1280)
    E.I('s_sub_u32 s18, s17, 20'); E.I('s_lshl_b32 s18, s18, 5')
    E.I('v_lshlrev_b32 v9, 3, v5'); E.I('v_add_u32 v9, s18, v9')
    E.I('s_mov_b32 s19, 4')
    E.label('K0_GO')
    E.reset_state()
    E.I('s_nop 4')
    E.I('v_mul_u32_u24 v9, 1280, v9'); E.I('v_lshl_add_u32 v9, v4, 1, v9')
    E.I('s_mul_i32 s19, s19, 1280')
    for j in range(4):
        E.I(f'buffer_load_ushort v{12+j}, v9, s[24:27], 0 offen offset:{1280*j}')
    for j in range(4):
        E.I(f'buffer_load_ushort v{16+j}, v9, s[24:27], s19 offen offset:{1280*j}')
    for j in range(4):
        E.I(f'v_lshl_or_b32 v{20+j}, v{13+2*j}, 16, v{12+2*j}')
    E.I('buffer_store_dwordx4 v[20:23], v8, s[12:15], 0 offen' + os.environ.get('K0_SC', ' sc1'))
    E.waitcnt(vm=0)
    ts_end(E, 0, 6, 7)
    E.label('K0_END')
    return kernel_text(name, E.text(), 64, 64)
if __name__ == '__main__':
    print(gen_k0())
```

```python
from common import *

import os
def OPT(n): return os.environ.get('K1_' + n) == '1'
SC = os.environ.get('K1_SC', ' sc1')
SLOT = 20480; NSLOT = 5
XST = SLOT * NSLOT
LDS_BYTES = XST + 4 * 3 * 4096

V_TID=0; V_LANE=1
V_TRLO=2
V_TRHI=7
V_WD=12
V_XD=17
V_XR=21
V_ST=25
V_ONE=30
V_T=32
ACC=[96, 176]
A_X=0; A_W=160
S_X=8; S_W=12; S_WS=16
S_WAVE=20; S_RB=21; S_TYPE=22; S_WOFF=23; S_XOFF=24; S_M0W=25; S_M0X=26; S_SCALE=27; S_TMP=28

PERM_QK = [[0,1,2,3,5,6,4,7],[0,1,2,3,4,5,6,7],[0,1,2,3,4,5,6,7],[1,2,3,4,0,5,6,7],[0,1,3,4,5,6,2,7]]
HEAD_SLOTS = [((0,0),(0,1)),((0,2),(1,0)),((1,1),(1,2)),((2,0),(2,1)),((2,2),(2,3)),((3,0),(3,1)),((3,3),(4,0)),((4,1),(4,2))]
SINGLE_SLOTS = [(0,3),(1,3),(3,2),(4,3)]

def common_setup(E):
    E.I(f'v_and_b32 v{V_LANE}, 63, v0')
    E.I(f'v_lshrrev_b32 v{V_T}, 6, v0')
    E.I(f'v_readfirstlane_b32 s{S_WAVE}, v{V_T}')
    E.I(f's_lshl_b32 s{S_TMP}, s{S_RB}, 7'); E.I(f's_lshl_b32 s{S_TMP+1}, s{S_WAVE}, 5')
    E.I(f's_add_u32 s{S_TMP}, s{S_TMP}, s{S_TMP+1}')
    E.I(f'v_lshrrev_b32 v{V_T}, 3, v{V_LANE}')
    E.I(f'v_add_u32 v{V_T}, s{S_TMP}, v{V_T}')
    E.I(f'v_mul_u32_u24 v{V_T}, 1280, v{V_T}')
    E.I(f'v_and_b32 v{V_T+1}, 7, v{V_LANE}')
    E.I(f'v_lshrrev_b32 v{V_T+2}, 4, v{V_LANE}')
    for i in range(4):
        E.I(f'v_add_u32 v{V_T+3}, {4*(i&1)}, v{V_T+2}')
        E.I(f'v_xor_b32 v{V_T+3}, v{V_T+1}, v{V_T+3}')
        E.I(f'v_lshl_add_u32 v{V_XD+i}, v{V_T+3}, 4, v{V_T}')
        if i: E.I(f'v_add_u32 v{V_XD+i}, {i*(8*1280-1024)}, v{V_XD+i}')
    E.I(f's_mul_i32 s{S_M0X}, s{S_WAVE}, 12288'); E.I(f's_add_u32 s{S_M0X}, s{S_M0X}, {XST}')
    E.I(f'v_and_b32 v{V_T}, 31, v{V_LANE}')
    E.I(f'v_lshrrev_b32 v{V_T+1}, 1, v{V_T}'); E.I(f'v_and_b32 v{V_T+1}, 7, v{V_T+1}')
    E.I(f'v_lshrrev_b32 v{V_T+2}, 5, v{V_LANE}')
    E.I(f'v_lshlrev_b32 v{V_T}, 7, v{V_T}'); E.I(f'v_add_u32 v{V_T}, s{S_M0X}, v{V_T}')
    for s in range(4):
        E.I(f'v_add_u32 v{V_T+3}, {2*s}, v{V_T+2}')
        E.I(f'v_xor_b32 v{V_T+3}, v{V_T+3}, v{V_T+1}')
        E.I(f'v_lshl_add_u32 v{V_XR+s}, v{V_T+3}, 4, v{V_T}')

def setup_glu(E):
    l = V_LANE; t = V_T
    E.I(f'v_bfe_u32 v{t}, v{l}, 4, 1')
    E.I(f'v_lshrrev_b32 v{t+1}, 5, v{l}')
    E.I(f'v_bfe_u32 v{t+2}, v{l}, 2, 2')
    E.I(f'v_and_b32 v{t+3}, 3, v{l}')
    E.I(f'v_lshl_add_u32 v{t+4}, v{t+1}, 3, v{t+2}')
    E.I(f'v_lshlrev_b32 v{t+4}, 7, v{t+4}')
    E.I(f'v_lshl_add_u32 v{t+4}, v{t}, 13, v{t+4}')
    E.I(f'v_and_b32 v{t+5}, 1, v{t+3}'); E.I(f'v_lshlrev_b32 v{t+5}, 1, v{t+5}')
    E.I(f'v_lshrrev_b32 v{t+6}, 1, v{t+3}'); E.I(f'v_add_u32 v{t+5}, v{t+5}, v{t+6}')
    E.I(f'v_lshl_add_u32 v{t+4}, v{t+5}, 3, v{t+4}')
    E.I(f'v_lshrrev_b32 v{t+5}, 1, v{t+2}')
    E.I(f'v_lshl_add_u32 v{t+5}, v{t}, 1, v{t+5}')
    for j in range(4):
        E.I(f'v_xor_b32 v{t+6}, {j}, v{t+5}')
        E.I(f'v_lshl_add_u32 v{V_TRLO+j}, v{t+6}, 5, v{t+4}')
        E.I(f'v_add_u32 v{V_TRHI+j}, {3*SLOT}, v{V_TRLO+j}')
    E.I(f's_and_b32 s{S_TMP}, s{S_WAVE}, 1'); E.I(f's_lshl_b32 s{S_TMP}, s{S_TMP}, 5')
    E.I(f's_lshr_b32 s{S_TMP+1}, s{S_WAVE}, 1'); E.I(f's_lshl_b32 s{S_TMP+1}, s{S_TMP+1}, 1')
    E.I(f'v_lshrrev_b32 v{t}, 3, v{l}')
    E.I(f'v_bfe_u32 v{t+1}, v{l}, 4, 1')
    E.I(f'v_or_b32 v{t+1}, s{S_TMP+1}, v{t+1}')
    E.I(f'v_bfe_u32 v{t+2}, v{l}, 1, 2')
    E.I(f'v_xor_b32 v{t+2}, v{t+2}, v{t+1}')
    E.I(f'v_lshlrev_b32 v{t+2}, 5, v{t+2}')
    E.I(f'v_and_b32 v{t+3}, 1, v{l}'); E.I(f'v_lshl_add_u32 v{t+2}, v{t+3}, 4, v{t+2}')
    E.I(f'v_add_u32 v{t}, s{S_TMP}, v{t}')
    E.I(f'v_mul_u32_u24 v{t}, 3456, v{t}')
    E.I(f'v_add_u32 v{V_WD}, v{t}, v{t+2}')
    for i in range(1, 4):
        E.I(f'v_add_u32 v{V_WD+i}, {i*(8*3456-1024)}, v{V_WD}')
    E.I(f's_lshl_b32 s{S_M0W}, s{S_WAVE}, 12')
    E.I(f's_lshl_b32 s{S_TMP}, s{S_RB}, 1'); E.I(f's_lshr_b32 s{S_TMP+1}, s{S_WAVE}, 1'); E.I(f's_add_u32 s{S_TMP}, s{S_TMP}, s{S_TMP+1}')
    E.I(f's_mul_i32 s{S_TMP}, s{S_TMP}, {NKS*4096}')
    E.I(f's_and_b32 s{S_TMP+1}, s{S_WAVE}, 1'); E.I(f's_lshl_b32 s{S_TMP+1}, s{S_TMP+1}, 11')
    E.I(f's_add_u32 s{S_TMP}, s{S_TMP}, s{S_TMP+1}'); E.I(f's_add_u32 s{S_TMP}, s{S_TMP}, {WS_ACT}')
    E.I(f'v_bfe_u32 v{t}, v{l}, 4, 1'); E.I(f'v_lshlrev_b32 v{t}, 10, v{t}')
    E.I(f'v_lshrrev_b32 v{t+1}, 5, v{l}'); E.I(f'v_lshl_add_u32 v{t}, v{t+1}, 8, v{t}')
    E.I(f'v_and_b32 v{t+1}, 15, v{l}'); E.I(f'v_lshl_add_u32 v{t}, v{t+1}, 4, v{t}')
    E.I(f'v_add_u32 v{V_ST}, s{S_TMP}, v{t}')

def setup_qkv(E, isV):
    l = V_LANE; t = V_T
    E.I(f'v_lshrrev_b32 v{t+1}, 5, v{l}')
    E.I(f'v_bfe_u32 v{t+2}, v{l}, 2, 2')
    E.I(f'v_lshl_add_u32 v{t+4}, v{t+1}, 3, v{t+2}')
    E.I(f'v_mul_u32_u24 v{t+4}, 320, v{t+4}')
    E.I(f'v_bfe_u32 v{t}, v{l}, 4, 1'); E.I(f'v_and_b32 v{t+3}, 3, v{l}')
    E.I(f'v_lshl_add_u32 v{t+3}, v{t}, 2, v{t+3}')
    E.I(f'v_lshlrev_b32 v{t+5}, 2, v{t+3}')
    for j in range(5):
        perm = list(range(8)) if isV else PERM_QK[j]
        word = sum(perm[c] << (4*c) for c in range(8))
        E.I(f's_mov_b32 s{S_TMP}, {word}')
        E.I(f'v_lshrrev_b32 v{t+6}, v{t+5}, s{S_TMP}')
        E.I(f'v_and_b32 v{t+6}, 15, v{t+6}')
        E.I(f'v_lshl_add_u32 v{t+6}, v{t+6}, 3, v{t+4}')
        E.I(f'v_add_u32 v{V_TRLO+j}, {64*j}, v{t+6}')
        E.I(f'v_add_u32 v{V_TRHI+j}, {3*SLOT}, v{V_TRLO+j}')
    E.I(f's_lshl_b32 s{S_TMP}, s{S_WAVE}, 4')
    for i in range(5):
        E.I(f'v_add_u32 v{t}, {64*i}, v{l}')
        E.I(f'v_mul_u32_u24 v{t+1}, 3277, v{t}'); E.I(f'v_lshrrev_b32 v{t+1}, 16, v{t+1}')
        E.I(f'v_mul_u32_u24 v{t+2}, 20, v{t+1}'); E.I(f'v_sub_u32 v{t+2}, v{t}, v{t+2}')
        E.I(f'v_add_u32 v{t+1}, s{S_TMP}, v{t+1}')
        E.I(f'v_mul_u32_u24 v{t+1}, 3840, v{t+1}')
        E.I(f'v_lshl_add_u32 v{V_WD+i}, v{t+2}, 4, v{t+1}')
        if 0 < i < 4: E.I(f'v_subrev_u32 v{V_WD+i}, {1024*i}, v{V_WD+i}')
    E.I(f's_mul_i32 s{S_M0W}, s{S_WAVE}, 5120')
    E.I(f's_lshl_b32 s{S_TMP}, s{S_RB}, 2'); E.I(f's_add_u32 s{S_TMP}, s{S_TMP}, s{S_WAVE}')
    if not isV:
        E.I(f's_lshl_b32 s{S_TMP+1}, s{S_TMP}, 10')
        E.I(f'v_lshlrev_b32 v{t}, 4, v{l}'); E.I(f'v_add_u32 v{V_ST}, s{S_TMP+1}, v{t}')
        E.I(f's_lshl_b32 s{S_TMP+1}, s{S_TMP}, 8')
        E.I(f'v_and_b32 v{t}, 31, v{l}'); E.I(f'v_lshlrev_b32 v{t}, 3, v{t}')
        E.I(f'v_lshrrev_b32 v{t+1}, 5, v{l}'); E.I(f'v_lshl_add_u32 v{t}, v{t+1}, 14, v{t}')
        E.I(f'v_add_u32 v{V_ST+1}, s{S_TMP+1}, v{t}')
    else:
        E.I(f's_mul_i32 s{S_TMP+1}, s{S_TMP}, {VT}')
        E.I(f'v_lshrrev_b32 v{t+3}, 5, v{l}'); E.I(f'v_mul_u32_u24 v{t+3}, 336, v{t+3}')
        E.I(f'v_add_u32 v{t+3}, s{S_TMP+1}, v{t+3}')
        E.I(f's_mov_b32 s{S_TMP+2}, {VH}')
        E.I(f'v_bfe_u32 v{t}, v{l}, 2, 3'); E.I(f'v_mul_lo_u32 v{t}, v{t}, s{S_TMP+2}')
        E.I(f'v_and_b32 v{t+1}, 3, v{l}'); E.I(f'v_mul_u32_u24 v{t+1}, 336, v{t+1}')
        E.I(f'v_add_u32 v{t}, v{t}, v{t+1}'); E.I(f'v_add_u32 v{t}, s{S_TMP+1}, v{t}')
        E.I(f'v_add_u32 v{V_ONE}, 320, v{t}')
        for i in range(4): E.I(f'v_mov_b32 v{V_T+16+i}, 0x3f803f80')
        for j in range(5):
            E.I(f'v_and_b32 v{t}, 31, v{l}'); E.I(f'v_add_u32 v{t}, {32*j}, v{t}')
            E.I(f'v_mul_u32_u24 v{t+1}, 3277, v{t}'); E.I(f'v_lshrrev_b32 v{t+1}, 16, v{t+1}')
            E.I(f'v_mul_u32_u24 v{t+2}, 20, v{t+1}'); E.I(f'v_sub_u32 v{t+2}, v{t}, v{t+2}')
            E.I(f'v_mul_lo_u32 v{t+1}, v{t+1}, s{S_TMP+2}')
            E.I(f'v_lshl_add_u32 v{t+1}, v{t+2}, 4, v{t+1}')
            E.I(f'v_add_u32 v{V_ST+j}, v{t+1}, v{t+3}')

def epi_glu(acc, soff):
    L = []
    for j in range(4):
        g = acc + 16*j; u = g + 8
        for i in range(8): L.append(f'v_mul_f32 v{g+i}, 0xbfb8aa3b, v{g+i}')
        for i in range(8): L.append(f'v_exp_f32 v{g+i}, v{g+i}')
        for i in range(8): L.append(f'v_add_f32 v{g+i}, 1.0, v{g+i}')
        for i in range(8): L.append(f'v_rcp_f32 v{g+i}, v{g+i}')
        for i in range(8): L.append(f'v_mul_f32 v{u+i}, v{u+i}, v{g+i}')
        for i in range(4): L.append(f'v_cvt_pk_bf16_f32 v{g+i}, v{u+2*i}, v{u+2*i+1}')
        L.append(f'buffer_store_dwordx4 v[{g}:{g+3}], v{V_ST}, s[{S_WS}:{S_WS+3}], s{soff + (j>>1)} offen offset:{(j&1)*512}{SC}')
    return L

def epi_qk(acc, soff1, soff2):
    L = []
    tmp = [V_T, V_T+4, V_T+8, V_T+12]
    n = 0
    def slot(ts): return acc + 16*ts[0] + 4*ts[1]
    for h in range(8):
        d = tmp[n % 4]; n += 1
        a, b = slot(HEAD_SLOTS[h][0]), slot(HEAD_SLOTS[h][1])
        L += [f'v_mul_f32 v{r}, s{S_SCALE}, v{r}' for r in list(range(a, a+4)) + list(range(b, b+4))]
        L += [f'v_cvt_pk_bf16_f32 v{d}, v{a}, v{a+1}', f'v_cvt_pk_bf16_f32 v{d+1}, v{a+2}, v{a+3}',
              f'v_cvt_pk_bf16_f32 v{d+2}, v{b}, v{b+1}', f'v_cvt_pk_bf16_f32 v{d+3}, v{b+2}, v{b+3}']
        L.append(f's_add_u32 s{S_TMP}, s{soff1}, {h*65536}')
        L.append(f'buffer_store_dwordx4 v[{d}:{d+3}], v{V_ST}, s[{S_WS}:{S_WS+3}], s{S_TMP} offen{SC}')
    for i in range(4):
        d = tmp[n % 4]; n += 1
        a = slot(SINGLE_SLOTS[i])
        L += [f'v_mul_f32 v{r}, s{S_SCALE}, v{r}' for r in range(a, a+4)]
        L += [f'v_cvt_pk_bf16_f32 v{d}, v{a}, v{a+1}', f'v_cvt_pk_bf16_f32 v{d+1}, v{a+2}, v{a+3}']
        L.append(f's_add_u32 s{S_TMP}, s{soff2}, {i*32768}')
        L.append(f'buffer_store_dwordx2 v[{d}:{d+1}], v{V_ST+1}, s[{S_WS}:{S_WS+3}], s{S_TMP} offen{SC}')
    return L

def epi_v(acc, soff):
    L = []
    tmp = [V_T, V_T+4, V_T+8, V_T+12]
    n = 0
    for j in range(5):
        for s in range(2):
            d = tmp[n % 4]; n += 1
            a = acc + 16*j + 8*s
            for i in range(4): L.append(f'v_cvt_pk_bf16_f32 v{d+i}, v{a+2*i}, v{a+2*i+1}')
            L.append(f'buffer_store_dwordx4 v[{d}:{d+3}], v{V_ST+j}, s[{S_WS}:{S_WS+3}], s{soff} offen offset:{672*s}{SC}')
    L.append(f'buffer_store_dwordx4 v[{V_T+16}:{V_T+19}], v{V_ONE}, s[{S_WS}:{S_WS+3}], s{soff} offen{SC}')
    return L

class Path:
    def __init__(self, E, kind, npanels):
        self.E = E; self.kind = kind; self.np = npanels
        self.NT = 4 if kind == 'G' else 5
        self.pitch = 128 if kind == 'G' else 320
        self.wpitch = 3456 if kind == 'G' else 3840
        self.nch = 10 * npanels
    def dma_w(self, cg):
        if cg >= self.nch: return []
        p, c = divmod(cg, 10)
        slot = cg % NSLOT
        L = []
        pb = 128 if self.kind == 'G' else 320
        L.append(('s', f's_add_u32 s{S_TMP+4}, s{S_WOFF}, {c*64*self.wpitch + p*pb}'))
        L.append(('s', f's_add_u32 m0, s{S_M0W}, {slot*SLOT}'))
        n = 4 if self.kind == 'G' else 5
        for i in range(n):
            if i == 4:
                L.append(('s', f's_add_u32 m0, s{S_M0W}, {slot*SLOT + 4096}'))
                L.append(('W', f'buffer_load_dwordx4 v{V_WD+4}, s[{S_W}:{S_W+3}], s{S_TMP+4} offen lds'))
            else:
                L.append(('W', f'buffer_load_dwordx4 v{V_WD+i}, s[{S_W}:{S_W+3}], s{S_TMP+4} offen offset:{1024*i} lds'))
        return [(k, t, cg) for k, t in L]
    def dma_x(self, c):
        if c >= 10: return []
        L = [('s', f's_add_u32 m0, s{S_M0X}, {(c%3)*4096}'), ('s', f's_mov_b32 s{S_XOFF}, {c*128}')]
        for i in range(4):
            L.append(('X', f'buffer_load_dwordx4 v{V_XD+i}, s[{S_X}:{S_X+3}], s{S_XOFF} offen offset:{1024*i} lds'))
        return [(k, t, c) for k, t in L]
    def put(self, item):
        k, t, c = item
        self.E.I(t, tag=(k, c) if k != 's' else None)
    def xread(self, c):
        for s in range(4):
            self.E.I(f'ds_read_b128 a[{A_X+16*c+4*s}:{A_X+16*c+4*s+3}], v{V_XR+s} offset:{(c%3)*4096}')
    def wread(self, cg, s, j):
        slot = cg % NSLOT
        base = (V_TRLO if slot < 3 else V_TRHI) + j
        off = (slot % 3 if slot < 3 else slot - 3) * SLOT + s * 16 * self.pitch
        par = (cg*4 + s) & 1
        d = A_W + 20*par + 4*j
        return [f'ds_read_b64_tr_b16 a[{d}:{d+1}], v{base} offset:{off}',
                f'ds_read_b64_tr_b16 a[{d+2}:{d+3}], v{base} offset:{off + 4*self.pitch}']
    def emit(self, epi_fn):
        E = self.E; NT = self.NT
        for c in range(3):
            for it in self.dma_x(c): self.put(it)
            for it in self.dma_w(c): self.put(it)
        stamp(E)
        E.wait_tag(('W', 0)); E.I('s_barrier')
        stamp(E)
        self.xread(0)
        for j in range(NT):
            for t in self.wread(0, 0, j): E.I(t)
        pending_epi = []
        for p in range(self.np):
            acc = ACC[p & 1]
            nslots = 10*4*NT
            slot_i = 0
            epi = pending_epi
            epi_start = NT + 2
            for c in range(10):
                cg = 10*p + c
                dq = []
                if p == 0 and not OPT('NOX'): dq += self.dma_x(c + 3)
                if not OPT('NODMA'): dq += self.dma_w(cg + 3)
                ndma = sum(1 for it in dq if it[0] != 's'); issued = 0
                for s in range(4):
                    last_step = (s == 3)
                    if last_step and cg + 1 < self.nch:
                        while dq: self.put(dq.pop(0))
                        E.wait_tag(('W', cg + 1)); E.I('s_barrier')
                        if p == 0 and c + 1 < 10: self.xread(c + 1)
                    for j in range(NT):
                        ks = 4*c + s
                        wf = A_W + 20*((cg*4 + s) & 1) + 4*j
                        xf = A_X + 4*ks
                        d = acc + 16*j
                        srcC = '0' if ks == 0 else f'v[{d}:{d+15}]'
                        if self.kind == 'V':
                            E.I(f'v_mfma_f32_32x32x16_bf16 v[{d}:{d+15}], a[{xf}:{xf+3}], a[{wf}:{wf+3}], {srcC}')
                        else:
                            E.I(f'v_mfma_f32_32x32x16_bf16 v[{d}:{d+15}], a[{wf}:{wf+3}], a[{xf}:{xf+3}], {srcC}')
                        if s < 3: nxt = (cg, s + 1)
                        else: nxt = (cg + 1, 0)
                        if nxt[0] < self.nch:
                            for t in self.wread(nxt[0], nxt[1], j): E.I(t)
                        slot_c = s*NT + j
                        if OPT('SPREAD'):
                            go = dq and issued < ndma and slot_c >= 1 + issued * (3*NT - 1) / ndma
                        else: go = dq and slot_c > 0
                        if go:
                            it = dq.pop(0); self.put(it)
                            while it[0] == 's' and dq:
                                it = dq.pop(0); self.put(it)
                            issued += 1
                        if epi and slot_i >= epi_start:
                            rem = nslots - 4 - slot_i
                            k = max(1, -(-len(epi) // max(rem, 1)))
                            for _ in range(min(k, len(epi))): E.I(epi.pop(0))
                        slot_i += 1
            while epi: E.I(epi.pop(0))
            stamp(E)
            pending_epi = epi_fn(p, acc) if not OPT('NOEPI') else []
        for t in pending_epi: E.I(t)

def gen_k1(name='k1_kernel'):
    E = Emitter()
    E.I('s_cmp_ge_u32 s2, 256'); E.I('s_cbranch_scc1 K1_END'); ts_begin(E)
    E.I(f's_load_dwordx2 s[4:5], s[0:1], {KA_WS}')
    E.I(f's_load_dwordx2 s[6:7], s[0:1], {KA_WQKV}')
    E.I(f's_load_dwordx4 s[32:35], s[0:1], {KA_WG}')
    E.I('s_and_b32 s36, s2, 7'); E.I('s_lshr_b32 s37, s2, 3')
    E.I('s_and_b32 s38, s36, 1'); E.I('s_lshl_b32 s38, s38, 3'); E.I('s_and_b32 s39, s37, 7')
    E.I(f's_add_u32 s{S_RB}, s38, s39')
    E.I('s_lshr_b32 s38, s36, 1'); E.I('s_lshl_b32 s38, s38, 2'); E.I('s_lshr_b32 s39, s37, 3')
    E.I(f's_add_u32 s{S_TYPE}, s38, s39')
    E.I(f's_cmp_eq_u32 s{S_TYPE}, 15'); E.I('s_cbranch_scc1 K1_END')
    E.waitcnt(lg=0)
    srd(E, S_WS, 4, 5, WS_SIZE)
    E.I(f's_add_u32 s40, s4, {WS_XN}'); E.I('s_addc_u32 s41, s5, 0')
    srd(E, S_X, 40, 41, 2048*1280)
    common_setup(E)
    E.I(f's_cmp_ge_u32 s{S_TYPE}, 6'); E.I('s_cbranch_scc1 K1_GLU')
    srd(E, S_W, 6, 7, 640*3840)
    E.I(f's_mul_i32 s{S_WOFF}, s{S_TYPE}, 640')
    E.I(f's_cmp_ge_u32 s{S_TYPE}, 4'); E.I('s_cbranch_scc1 K1_V')
    setup_qkv(E, False)
    E.I(f's_and_b32 s42, s{S_TYPE}, 1'); E.I('s_lshl_b32 s42, s42, 4')
    E.I(f's_cmp_lt_u32 s{S_TYPE}, 2')
    E.I(f's_mov_b32 s45, {WS_KF1}'); E.I(f's_cselect_b32 s43, {WS_QF1}, s45')
    E.I(f's_mov_b32 s45, {WS_KF2}'); E.I(f's_cselect_b32 s44, {WS_QF2}, s45')
    E.I(f's_mov_b32 s45, 1.0'); E.I(f's_cselect_b32 s{S_SCALE}, {QSCALE}, s45')
    E.I('s_lshl_b32 s45, s42, 16'); E.I('s_add_u32 s43, s43, s45')
    E.I('s_lshl_b32 s45, s42, 14'); E.I('s_add_u32 s44, s44, s45')
    E.I(f's_add_u32 s46, s43, {8*65536}'); E.I(f's_add_u32 s47, s44, {8*16384}')
    P = Path(E, 'Q', 2)
    P.emit(lambda p, acc: epi_qk(acc, 43 + 3*p, 44 + 3*p))
    ts_end(E, 1, 4, 5)
    E.I('s_endpgm')
    E.label('K1_V'); E.reset_state(); E.I('s_nop 4')
    setup_qkv(E, True)
    E.I(f's_and_b32 s42, s{S_TYPE}, 1'); E.I('s_lshl_b32 s42, s42, 4')
    E.I(f's_mul_i32 s43, s42, {VH}'); E.I(f's_add_u32 s43, s43, {WS_VF}')
    E.I(f's_add_u32 s44, s43, {8*VH}')
    E.nstamp = 1
    P = Path(E, 'V', 2)
    P.emit(lambda p, acc: epi_v(acc, 43 + p))
    ts_end(E, 1, 4, 5)
    E.I('s_endpgm')
    E.label('K1_GLU'); E.reset_state(); E.I('s_nop 4')
    E.I(f's_cmp_lt_u32 s{S_WAVE}, 2')
    E.I('s_cselect_b32 s40, s32, s34'); E.I('s_cselect_b32 s41, s33, s35')
    srd(E, S_W, 40, 41, 640*3456)
    setup_glu(E)
    E.I(f's_sub_u32 s42, s{S_TYPE}, 6'); E.I('s_mul_i32 s42, s42, 3')
    E.I(f's_lshl_b32 s{S_WOFF}, s42, 7')
    for p in range(3):
        E.I(f's_add_u32 s45, s42, {p}'); E.I('s_lshl_b32 s45, s45, 1'); E.I('s_add_u32 s45, s45, 20')
        E.I(f's_lshl_b32 s{46+2*p}, s45, 12'); E.I(f's_add_u32 s{47+2*p}, s{46+2*p}, 4096')
    E.nstamp = 1
    P = Path(E, 'G', 3)
    P.emit(lambda p, acc: epi_glu(acc, 46 + 2*p))
    ts_end(E, 1, 4, 5)
    E.label('K1_END')
    print('k1 nops', E.nops, E.count, file=__import__('sys').stderr)
    from collections import Counter
    print(Counter(w.split('@')[0] for n, w in E.nop_log).most_common(8), file=__import__('sys').stderr)
    return kernel_text(name, E.text(), 512, 256)
if __name__ == '__main__':
    print(gen_k1())
```

```python
import re

TRANS = ('v_exp_f32','v_log_f32','v_rcp_f32','v_rsq_f32','v_sqrt_f32','v_sin_f32','v_cos_f32','v_rcp_iflag_f32')

def regs_of(tok):
    tok = tok.strip()
    neg = tok
    tok = tok.lstrip('-')
    if tok.startswith('abs(') and tok.endswith(')'): tok = tok[4:-1]
    if tok.startswith('|') and tok.endswith('|'): tok = tok[1:-1]
    m = re.fullmatch(r'([vas])(\d+)', tok)
    if m: return [(m.group(1), int(m.group(2)))]
    m = re.fullmatch(r'([vas])\[(\d+):(\d+)\]', tok)
    if m: return [(m.group(1), i) for i in range(int(m.group(2)), int(m.group(3))+1)]
    if tok == 'vcc': return [('x','vcc')]
    if tok in ('vcc_lo','vcc_hi'): return [('x','vcc')]
    if tok in ('exec','exec_lo','exec_hi'): return [('x','exec')]
    if tok == 'm0': return [('x','m0')]
    if tok == 'scc': return [('x','scc')]
    return []

def split_ops(s):
    out, depth, cur = [], 0, ''
    for ch in s:
        if ch in '[(': depth += 1
        if ch in '])': depth -= 1
        if ch == ',' and depth == 0:
            out.append(cur.strip()); cur = ''
        else: cur += ch
    if cur.strip(): out.append(cur.strip())
    return out

class Ins:
    __slots__ = ('text','mn','reads','writes','kind','mods','passes','srcC','lds_dma','srcAB')

def parse(text):
    t = text.split(';')[0].strip()
    m = re.match(r'(\S+)\s*(.*)', t)
    mn, rest = m.group(1), m.group(2)
    ops = split_ops(rest)
    mods = ''
    if ops:
        last = ops[-1]
        parts = last.split()
        ops[-1] = parts[0]
        mods = ' '.join(parts[1:])
    I = Ins(); I.text = text; I.mn = mn; I.mods = mods; I.reads = []; I.writes = []; I.kind = 'other'
    I.passes = 0; I.srcC = []; I.lds_dma = False; I.srcAB = []
    R = lambda i: regs_of(ops[i]) if i < len(ops) else []
    base = re.sub(r'_(e32|e64|dpp|sdwa)$', '', mn)
    if mn.startswith('v_mfma'):
        I.kind = 'mfma'
        I.writes = R(0); I.srcAB = R(1) + R(2); I.srcC = R(3); I.reads = I.srcAB + I.srcC
        I.passes = 8 if ('32x32x16' in mn or '32x32x8_bf16' in mn) else (4 if '16x16x32' in mn else 16)
    elif mn.startswith('ds_'):
        I.kind = 'ds'
        if mn.startswith('ds_read') or mn.startswith('ds_bpermute') or mn.startswith('ds_swizzle') or mn.startswith('ds_permute'):
            I.writes = R(0)
            for i in range(1, len(ops)): I.reads += R(i)
        else:
            for i in range(len(ops)): I.reads += R(i)
    elif mn.startswith('buffer_') or mn.startswith('global_'):
        I.kind = 'vmem'
        allm = (mods + ' ' + ' '.join(ops)).split()
        if mn in ('buffer_inv','buffer_wbl2'):
            I.kind = 'vmem'
        elif 'lds' in mods.split() or mn.startswith('global_load_lds'):
            I.lds_dma = True
            for i in range(len(ops)): I.reads += R(i)
            I.reads.append(('x','m0'))
        elif '_load' in mn:
            I.writes = R(0)
            for i in range(1, len(ops)): I.reads += R(i)
        elif '_store' in mn:
            for i in range(len(ops)): I.reads += R(i)
            I.kind = 'vmem';
        elif 'atomic' in mn:
            for i in range(len(ops)): I.reads += R(i)
            if 'sc0' in mods.split(): I.writes = R(0)
        else:
            raise ValueError(text)
    elif mn.startswith('s_load') or mn.startswith('s_buffer_load') or mn in ('s_memtime','s_memrealtime'):
        I.kind = 'smem'; I.writes = R(0)
        for i in range(1, len(ops)): I.reads += R(i)
    elif mn.startswith('s_'):
        I.kind = 'salu'
        nodst = ('s_cmp','s_cbranch','s_branch','s_waitcnt','s_barrier','s_nop','s_setprio','s_sleep','s_endpgm','s_bitcmp','s_setreg','s_sethalt')
        if any(mn.startswith(p) for p in nodst):
            for i in range(len(ops)): I.reads += R(i)
        else:
            I.writes = R(0)
            for i in range(1, len(ops)): I.reads += R(i)
            if 'saveexec' in mn: I.writes += [('x','exec')]; I.reads += [('x','exec')]
            if mn in ('s_addk_i32','s_mulk_i32'): I.reads += R(0)
    elif mn.startswith('v_'):
        I.kind = 'valu'
        if base in TRANS: I.kind = 'trans'
        if base.startswith('v_cmp'):
            I.writes = R(0)
            for i in range(1, len(ops)): I.reads += R(i)
            if base.startswith('v_cmpx'): I.writes += [('x','exec')]
        elif base.startswith('v_permlane') and 'swap' in base:
            I.writes = R(0) + R(1); I.reads = R(0) + R(1); I.kind = 'permlane'
        elif base in ('v_fmac_f32','v_dot2c_f32_bf16','v_pk_fmac_f16','v_fmaak_f32x'):
            I.writes = R(0)
            for i in range(0, len(ops)): I.reads += R(i)
        elif base in ('v_add_co_u32','v_sub_co_u32','v_addc_co_u32','v_subb_co_u32','v_subrev_co_u32'):
            I.writes = R(0) + R(1)
            for i in range(2, len(ops)): I.reads += R(i)
        elif base in ('v_readfirstlane_b32','v_readlane_b32'):
            I.writes = R(0);
            for i in range(1, len(ops)): I.reads += R(i)
            I.kind = 'readlane'
        else:
            I.writes = R(0)
            for i in range(1, len(ops)): I.reads += R(i)
            if mn.endswith('_dpp') or 'row_' in mods or 'quad_perm' in mods:
                I.reads += R(0); I.kind = 'dpp'
    else:
        raise ValueError('unknown instr: ' + text)
    return I

VALU_KINDS = ('valu','trans','permlane','readlane','dpp')

class Emitter:
    def __init__(self, auto=True):
        self.lines = []
        self.auto = auto
        self.reset_state()
        self.nops = 0
        self.nop_log = []
        self.count = {}
    def reset_state(self):
        self.pos = 0
        self.vm = []
        self.lg = []
        self.sm = []
        self.vm_n = 0; self.lg_n = 0
        self.last = {}
        self.lastC = {}
        self.laststore = {}
    def raw(self, s):
        self.lines.append(s)
    def label(self, name):
        self.lines.append(name + ':')
    def comment(self, s):
        self.lines.append('; ' + s)
    def _nop(self, n, why):
        self.nops += n
        self.nop_log.append((n, why))
        while n > 0:
            k = min(n, 16)
            self.lines.append(f's_nop {k-1}')
            self.pos += k; n -= k
    def _wait(self, vm=None, lg=None):
        parts = []
        if vm is not None:
            vm = min(vm, 63)
            parts.append(f'vmcnt({vm})')
            while len(self.vm) > vm: self.vm.pop(0)
        if lg is not None:
            lg = min(lg, 15)
            parts.append(f'lgkmcnt({lg})')
            while len(self.lg) > lg: self.lg.pop(0)
            if lg == 0: self.sm = []
        self.lines.append('s_waitcnt ' + ' '.join(parts))
        self.pos += 1
    def waitcnt(self, vm=None, lg=None):
        self._wait(vm, lg)
    def wait_tag(self, tag):
        idx = [i for i, o in enumerate(self.vm) if o['tag'] == tag]
        if idx:
            self._wait(vm=len(self.vm) - 1 - idx[-1])
    def wait_lds_all(self):
        if self.lg or self.sm: self._wait(lg=0)
    def drain(self):
        self._wait(vm=0, lg=0)
    def fence(self):
        self._wait(vm=0, lg=0)
        self._nop(16, 'fence'); self.last = {}; self.lastC = {}; self.laststore = {}
    def need(self, I):
        need = 0; why = ''
        def req(dist_needed, p, w):
            nonlocal need, why
            have = self.pos - p - 1
            if dist_needed - have > need:
                need = dist_needed - have; why = w
        touch_r = I.reads; touch_w = I.writes
        for r in touch_r:
            L = self.last.get(r)
            if not L: continue
            p, k, ps = L
            if k == 'mfma':
                if I.kind == 'mfma':
                    if r in I.srcAB: req({4:8, 8:12, 16:20}[ps], p, f'mfma D->AB {r}')
                    else:
                        if not (I.srcC and self.last.get(I.srcC[0]) == L and self.last.get(I.srcC[-1]) == L and getattr(self,'mf_first',{}).get(p) == (I.srcC[0], len(I.srcC), I.passes)):
                            req({4:6, 8:10, 16:18}[ps], p, f'mfma D->C overlap {r}')
                else:
                    req({4:8, 8:12, 16:20}[ps], p, f'mfma D->read {r} by {I.mn}')
            elif k in VALU_KINDS:
                if I.kind == 'mfma': req(2, p, f'valu->mfma {r}')
                if r[0] in ('s','x') and r != ('x','exec') :
                    if I.kind == 'vmem': req(5, p, f'valu sgpr->vmem {r}')
                    elif I.kind in VALU_KINDS: req(2 if I.kind != 'readlane' else 4, p, f'valu sgpr->valu {r}')
                    elif I.kind == 'salu': req(4, p, f'valu sgpr->salu {r}')
                    elif I.kind == 'smem': req(5, p, f'valu sgpr->smem {r}')
                if r == ('x','exec'): req(5, p, 'valu exec')
                if r[0] in ('v','a'):
                    if I.kind == 'readlane': req(1, p, f'valu->readlane {r}')
                    if I.kind in ('permlane','dpp'): req(2, p, f'valu->permlane/dpp {r}')
                    if k == 'trans' and I.kind in VALU_KINDS + ('mfma',): req(1 if I.kind!='mfma' else 2, p, f'trans->use {r}')
                    if k == 'trans' and I.kind in ('vmem','ds'): req(1, p, f'trans->mem {r}')
            elif k == 'salu':
                if r == ('x','m0') and I.lds_dma: req(1, p, 'm0->dma')
        for r in touch_w:
            L = self.last.get(r)
            if L and L[1] == 'mfma':
                p, k, ps = L
                if I.kind == 'mfma':
                    if not (I.srcC and r in I.srcC and getattr(self,'mf_first',{}).get(p) == (I.srcC[0], len(I.srcC), I.passes)):
                        req({4:8, 8:12, 16:20}[ps], p, f'mfma D WAW mfma {r}')
                else:
                    req({4:8, 8:12, 16:20}[ps], p, f'mfma D->write {r} by {I.mn}')
            C = self.lastC.get(r)
            if C and I.kind != 'mfma':
                req({4:3, 8:7, 16:15}[C[1]], C[0], f'mfma C WAR {r}')
            S = self.laststore.get(r)
            if S is not None:
                req(2, S, f'store data WAR {r}')
        return need, why
    def I(self, text, tag=None):
        import re as _re
        _m = _re.search(r'offset:(\d+)', text)
        if _m and text.startswith('buffer_'): assert int(_m.group(1)) < 4096, text
        if _m and text.startswith('ds_'): assert int(_m.group(1)) < 65536, text
        for line in text.strip().split('\n'):
            line = line.strip()
            if not line or line.startswith(';'):
                if line: self.lines.append(line)
                continue
            if line.endswith(':'):
                self.lines.append(line); continue
            self._one(line, tag)
    def _one(self, text, tag):
        I = parse(text)
        self.count[I.kind] = self.count.get(I.kind, 0) + 1
        if self.auto:
            touched = set(I.reads) | set(I.writes)
            idx = -1
            for i, o in enumerate(self.vm):
                if o['regs'] & touched: idx = i
            vmw = None
            if idx >= 0: vmw = len(self.vm) - 1 - idx
            idx = -1
            for i, o in enumerate(self.lg):
                if o['regs'] & touched: idx = i
            lgw = None
            if idx >= 0: lgw = len(self.lg) - 1 - idx
            if self.sm and (set(self.sm) & touched): lgw = 0
            if self.sm and lgw is not None: lgw = 0
            if vmw is not None or lgw is not None: self._wait(vmw, lgw)
            n, why = self.need(I)
            if n > 0: self._nop(n, why + ' @ ' + text)
        self.lines.append(text)
        if I.mn == 's_nop':
            m = re.search(r's_nop\s+(\d+)', text); self.pos += int(m.group(1)) + 1
            return
        if I.mn == 's_waitcnt':
            raise ValueError('use waitcnt()')
        p = self.pos
        if I.kind == 'vmem':
            self.vm.append({'regs': set(I.writes), 'tag': tag})
            if '_store' in I.mn and ('x4' in I.mn or 'x3' in I.mn):
                for r in I.reads[:4]: self.laststore[r] = p
            if len(self.vm) > 63:
                self._wait(vm=62)
        elif I.kind == 'ds':
            self.lg.append({'regs': set(I.writes), 'tag': tag})
        elif I.kind == 'smem':
            self.sm += I.writes
            self.lg.append({'regs': set(), 'tag': 'smem'})
        if I.kind == 'mfma':
            if not hasattr(self, 'mf_first'): self.mf_first = {}
            self.mf_first[p] = (I.writes[0], len(I.writes), I.passes)
            for r in I.srcC: self.lastC[r] = (p, I.passes)
        for r in I.writes:
            if I.kind in ('vmem','ds','smem'):
                self.last.pop(r, None)
            else:
                self.last[r] = (p, I.kind, I.passes)
        self.pos += 1
    def text(self):
        return '\n'.join(self.lines) + '\n'

KD_TMPL = """.section .rodata,"a"
.p2align 6
.amdhsa_kernel {name}
  .amdhsa_next_free_vgpr {vgpr}
  .amdhsa_next_free_sgpr {sgpr}
  .amdhsa_accum_offset {accum}
  .amdhsa_group_segment_fixed_size 0
  .amdhsa_kernarg_size 80
  .amdhsa_user_sgpr_count 2
  .amdhsa_user_sgpr_kernarg_segment_ptr 1
  .amdhsa_system_sgpr_workgroup_id_x 1
  .amdhsa_float_denorm_mode_32 3
.end_amdhsa_kernel
"""
def kernel_text(name, body, vgpr, accum, sgpr=102):
    return (f".text\n.globl {name}\n.p2align 8\n.type {name},@function\n{name}:\n" + body +
            "s_endpgm\n" + KD_TMPL.format(name=name, vgpr=vgpr, accum=accum, sgpr=sgpr))
```

```python
from common import *

import os
def OPT(n): return os.environ.get('K1_' + n) == '1'
SC = os.environ.get('K1_SC', ' sc1')
SLOT = 20480; NSLOT = 4
SST = SLOT * NSLOT
XST = SST + 32768
LDS_BYTES = XST + 4 * 3 * 4096
SFIN = SST; MRS = SST + 2048
WS_SP = 0x1D00000
FCHK = int(os.environ.get('K1_FCHK', '9'))
V_XC=176; V_SACC=192; V_ONES=208; V_SFR=212; V_STA=84; V_SD=224; V_SR=232; V_SST=233; V_FO=234
V_SROW=[52, 68]; V_SCOL=84; V_SPA=90; V_SFW=91; V_NM=92; V_RS=93; V_RI=94; V_SA=95; V_FL=46; V_FA=47
S_DBG=52; S_KQ=56; S_CG=57

V_TID=0; V_LANE=1
V_TRLO=2
V_TRHI=7
V_WD=12
V_XD=17
V_XR=21
V_ST=25
V_ONE=30
V_T=32
ACC=[96, 176]
A_X=0; A_W=160
S_X=8; S_W=12; S_WS=16
S_WAVE=20; S_RB=21; S_TYPE=22; S_WOFF=23; S_XOFF=24; S_M0W=25; S_M0X=26; S_SCALE=27; S_TMP=28

PERM_QK = [[0,1,2,3,5,6,4,7],[0,1,2,3,4,5,6,7],[0,1,2,3,4,5,6,7],[1,2,3,4,0,5,6,7],[0,1,3,4,5,6,2,7]]
HEAD_SLOTS = [((0,0),(0,1)),((0,2),(1,0)),((1,1),(1,2)),((2,0),(2,1)),((2,2),(2,3)),((3,0),(3,1)),((3,3),(4,0)),((4,1),(4,2))]
SINGLE_SLOTS = [(0,3),(1,3),(3,2),(4,3)]


def common_a(E):
    E.I(f'v_and_b32 v{V_LANE}, 63, v0')
    E.I(f'v_lshrrev_b32 v{V_T}, 6, v0')
    E.I(f'v_readfirstlane_b32 s{S_WAVE}, v{V_T}')
    E.I(f's_lshl_b32 s{S_TMP}, s{S_RB}, 7'); E.I(f's_lshl_b32 s{S_TMP+1}, s{S_WAVE}, 5')
    E.I(f's_add_u32 s{S_TMP}, s{S_TMP}, s{S_TMP+1}')
    E.I(f'v_lshrrev_b32 v{V_T}, 3, v{V_LANE}')
    E.I(f'v_add_u32 v{V_T}, s{S_TMP}, v{V_T}')
    E.I(f'v_mul_u32_u24 v{V_T}, 1280, v{V_T}')
    E.I(f'v_and_b32 v{V_T+1}, 7, v{V_LANE}')
    E.I(f'v_lshrrev_b32 v{V_T+2}, 4, v{V_LANE}')
    for i in range(4):
        E.I(f'v_add_u32 v{V_T+3}, {4*(i&1)}, v{V_T+2}')
        E.I(f'v_xor_b32 v{V_T+3}, v{V_T+1}, v{V_T+3}')
        E.I(f'v_lshl_add_u32 v{V_XD+i}, v{V_T+3}, 4, v{V_T}')
        if i: E.I(f'v_add_u32 v{V_XD+i}, {i*(8*1280-1024)}, v{V_XD+i}')
    E.I(f's_mul_i32 s{S_M0X}, s{S_WAVE}, 12288'); E.I(f's_add_u32 s{S_M0X}, s{S_M0X}, {XST}')
    E.I(f's_and_b32 s{S_KQ}, s{S_RB}, 3'); E.I(f's_lshr_b32 s{S_CG}, s{S_RB}, 2')

def common_b(E):
    E.I(f'v_and_b32 v{V_T}, 31, v{V_LANE}')
    E.I(f'v_lshrrev_b32 v{V_T+1}, 1, v{V_T}'); E.I(f'v_and_b32 v{V_T+1}, 7, v{V_T+1}')
    E.I(f'v_lshrrev_b32 v{V_T+2}, 5, v{V_LANE}')
    E.I(f'v_lshlrev_b32 v{V_T}, 7, v{V_T}'); E.I(f'v_add_u32 v{V_T}, s{S_M0X}, v{V_T}')
    for s in range(4):
        E.I(f'v_add_u32 v{V_T+3}, {2*s}, v{V_T+2}')
        E.I(f'v_xor_b32 v{V_T+3}, v{V_T+3}, v{V_T+1}')
        E.I(f'v_lshl_add_u32 v{V_XR+s}, v{V_T+3}, 4, v{V_T}')
    for i in range(4): E.I(f'v_mov_b32 v{V_ONES+i}, 0x3f803f80')
    for i in range(4): E.I(f'v_mov_b32 v{V_STA+i}, 0')
    t = V_T
    E.I(f's_lshl_b32 s{S_TMP}, s{S_TYPE}, 4'); E.I(f's_add_u32 s{S_TMP}, s{S_TMP}, s{S_RB}')
    E.I(f'v_mov_b32 v{t}, s{S_TMP}'); E.I(f'v_mov_b32 v{t+1}, {OOB}')
    E.I(f'v_cmp_eq_u32 vcc, 0, v0'); E.I(f'v_cndmask_b32 v{V_FO}, v{t+1}, v{t}, vcc')
    E.I(f's_lshl_b32 s{S_TMP}, s{S_TYPE}, 4')
    E.I(f'v_and_b32 v{t}, 3, v{V_LANE}'); E.I(f'v_lshlrev_b32 v{t}, 2, v{t}'); E.I(f'v_add_u32 v{V_FA}, s{S_TMP}, v{t}')

def sblk_setup(E, kind):
    l = V_LANE; t = V_T
    np_, pitch, n, wp = (10, 160, 7, 3840) if kind != 'G' else (6, 96, 8, 3456)
    magic = 6554 if np_ == 10 else 10923
    if kind != 'G':
        E.I(f's_mul_i32 s{S_TMP}, s{S_WAVE}, 448')
        E.I(f's_mul_i32 s{S_TMP+1}, s{S_TYPE}, 640'); E.I(f's_mul_i32 s{S_TMP+2}, s{S_CG}, 160')
        lim = 1600
    else:
        E.I(f's_and_b32 s{S_TMP}, s{S_WAVE}, 1'); E.I(f's_lshl_b32 s{S_TMP}, s{S_TMP}, 9')
        E.I(f's_sub_u32 s{S_TMP+1}, s{S_TYPE}, 6'); E.I(f's_mul_i32 s{S_TMP+1}, s{S_TMP+1}, 384')
        E.I(f's_mul_i32 s{S_TMP+2}, s{S_CG}, 96')
        lim = 960
    E.I(f's_add_u32 s{S_TMP+1}, s{S_TMP+1}, s{S_TMP+2}')
    E.I(f's_mul_i32 s{S_TMP+2}, s{S_KQ}, {160*wp}'); E.I(f's_add_u32 s{S_TMP+1}, s{S_TMP+1}, s{S_TMP+2}')
    E.I(f'v_mov_b32 v{t+4}, {OOB}')
    for i in range(n):
        E.I(f'v_add_u32 v{t}, s{S_TMP}, v{l}')
        if i: E.I(f'v_add_u32 v{t}, {64*i}, v{t}')
        E.I(f'v_mul_u32_u24 v{t+1}, {magic}, v{t}'); E.I(f'v_lshrrev_b32 v{t+1}, 16, v{t+1}')
        E.I(f'v_mul_u32_u24 v{t+2}, {np_}, v{t+1}'); E.I(f'v_sub_u32 v{t+2}, v{t}, v{t+2}')
        E.I(f'v_mul_u32_u24 v{t+1}, {wp}, v{t+1}')
        E.I(f'v_lshl_add_u32 v{t+1}, v{t+2}, 4, v{t+1}')
        E.I(f'v_add_u32 v{t+1}, s{S_TMP+1}, v{t+1}')
        if i & 3: E.I(f'v_subrev_u32 v{t+1}, {1024*(i&3)}, v{t+1}')
        E.I(f'v_cmp_gt_u32 vcc, {lim}, v{t}')
        E.I(f'v_cndmask_b32 v{V_SD+i}, v{t+4}, v{t+1}, vcc')
    L = []
    if kind != 'G': E.I(f's_mul_i32 s{S_TMP+3}, s{S_WAVE}, 7168')
    else:
        E.I(f's_lshr_b32 s{S_TMP+3}, s{S_WAVE}, 1'); E.I(f's_lshl_b32 s{S_TMP+3}, s{S_TMP+3}, 14')
        E.I(f's_and_b32 s{S_TMP+2}, s{S_WAVE}, 1'); E.I(f's_lshl_b32 s{S_TMP+2}, s{S_TMP+2}, 13'); E.I(f's_add_u32 s{S_TMP+3}, s{S_TMP+3}, s{S_TMP+2}')
    for i in range(n):
        if i % 4 == 0: E.I(f's_add_u32 m0, s{S_TMP+3}, {SST + 1024*i}')
        E.I(f'buffer_load_dwordx4 v{V_SD+i}, s[{S_W}:{S_W+3}], 0 offen offset:{1024*(i&3)} lds', tag=('S', 0))

def sblk_addr(E, kind):
    l = V_LANE; t = V_T
    pitch = 160 if kind != 'G' else 96
    E.I(f'v_lshrrev_b32 v{t+1}, 5, v{l}'); E.I(f'v_bfe_u32 v{t+2}, v{l}, 2, 2')
    E.I(f'v_lshl_add_u32 v{t+2}, v{t+1}, 3, v{t+2}'); E.I(f'v_mul_u32_u24 v{t+2}, {pitch}, v{t+2}')
    E.I(f'v_bfe_u32 v{t}, v{l}, 4, 1'); E.I(f'v_and_b32 v{t+3}, 3, v{l}')
    E.I(f'v_lshl_add_u32 v{t+3}, v{t}, 2, v{t+3}'); E.I(f'v_lshl_add_u32 v{t+2}, v{t+3}, 3, v{t+2}')
    if kind != 'G':
        E.I(f's_min_u32 s{S_TMP}, s{S_WAVE}, 2'); E.I(f's_lshl_b32 s{S_TMP+1}, s{S_TMP}, 6'); E.I(f's_add_u32 s{S_TMP+1}, s{S_TMP+1}, {SST}')
        E.I(f's_lshl_b32 s{S_TMP}, s{S_WAVE}, 5')
        E.I(f's_mul_i32 s{S_TMP+2}, s{S_CG}, 80'); lim = 80
    else:
        E.I(f's_and_b32 s{S_TMP}, s{S_WAVE}, 1'); E.I(f's_lshl_b32 s{S_TMP+1}, s{S_TMP}, 6')
        E.I(f's_lshr_b32 s{S_TMP+2}, s{S_WAVE}, 1'); E.I(f's_lshl_b32 s{S_TMP+3}, s{S_TMP+2}, 14')
        E.I(f's_add_u32 s{S_TMP+1}, s{S_TMP+1}, s{S_TMP+3}'); E.I(f's_add_u32 s{S_TMP+1}, s{S_TMP+1}, {SST}')
        E.I(f's_lshl_b32 s{S_TMP}, s{S_TMP}, 5')
        E.I(f's_mul_i32 s{S_TMP+2}, s{S_TMP+2}, 192'); E.I(f's_mul_i32 s{S_TMP+3}, s{S_CG}, 48'); E.I(f's_add_u32 s{S_TMP+2}, s{S_TMP+2}, s{S_TMP+3}')
        lim = 48
    E.I(f'v_add_u32 v{V_SR}, s{S_TMP+1}, v{t+2}')
    E.I(f's_lshl_b32 s{S_TMP+3}, s{S_TYPE}, 2'); E.I(f's_add_u32 s{S_TMP+3}, s{S_TMP+3}, s{S_KQ}'); E.I(f's_mul_i32 s{S_TMP+3}, s{S_TMP+3}, 384')
    E.I(f's_add_u32 s{S_TMP+3}, s{S_TMP+3}, s{S_TMP+2}')
    E.I(f'v_add_u32 v{t}, s{S_TMP}, v{l}')
    E.I(f'v_add_u32 v{t+1}, s{S_TMP+3}, v{t}'); E.I(f'v_lshlrev_b32 v{t+1}, 2, v{t+1}'); E.I(f'v_add_u32 v{t+1}, {WS_SP}, v{t+1}')
    E.I(f'v_mov_b32 v{t+2}, {OOB}')
    E.I(f'v_cmp_gt_u32 vcc, {lim}, v{t}'); E.I(f'v_cndmask_b32 v{t+1}, v{t+2}, v{t+1}, vcc')
    E.I(f'v_cmp_gt_u32 vcc, 32, v{l}'); E.I(f'v_cndmask_b32 v{V_SST}, v{t+2}, v{t+1}, vcc')

def sfin_setup(E, kind):
    t = V_T; l = V_LANE
    if kind == 'G':
        E.I(f'v_and_b32 v{t}, 127, v0')
        E.I(f'v_lshrrev_b32 v{t+1}, 5, v{t}'); E.I(f'v_lshlrev_b32 v{t+1}, 4, v{t+1}')
        E.I(f'v_bfe_u32 v{t+2}, v{t}, 2, 1'); E.I(f'v_lshl_add_u32 v{t+1}, v{t+2}, 3, v{t+1}')
        E.I(f'v_bfe_u32 v{t+2}, v{t}, 3, 1'); E.I(f'v_lshl_add_u32 v{t+1}, v{t+2}, 2, v{t+1}')
        E.I(f'v_and_b32 v{t+2}, 3, v{t}'); E.I(f'v_add_u32 v{t+1}, v{t+1}, v{t+2}')
        E.I(f'v_bfe_u32 v{t+2}, v{t}, 4, 1'); E.I(f'v_mul_u32_u24 v{t+2}, 192, v{t+2}'); E.I(f'v_add_u32 v{t+1}, v{t+1}, v{t+2}')
    else:
        E.I(f'v_subrev_u32 v{t+1}, 96, v0'); E.I(f'v_cmp_gt_u32 vcc, 160, v0'); E.I(f'v_cndmask_b32 v{t}, v{t+1}, v0, vcc')
        if kind == 'V': E.I(f'v_mov_b32 v{t+1}, v{t}')
        else:
            E.I(f'v_lshrrev_b32 v{t+2}, 5, v{t}'); E.I(f'v_bfe_u32 v{t+3}, v{t}, 2, 3'); E.I(f'v_lshlrev_b32 v{t+3}, 2, v{t+3}')
            E.I(f'v_mov_b32 v{t+4}, {sum(PERM_QK[0][c] << (4*c) for c in range(8))}')
            for j in range(1, 5):
                E.I(f'v_mov_b32 v{t+5}, {sum(PERM_QK[j][c] << (4*c) for c in range(8))}')
                E.I(f'v_cmp_eq_u32 vcc, {j}, v{t+2}'); E.I(f'v_cndmask_b32 v{t+4}, v{t+4}, v{t+5}, vcc')
            E.I(f'v_lshrrev_b32 v{t+4}, v{t+3}, v{t+4}'); E.I(f'v_and_b32 v{t+4}, 15, v{t+4}')
            E.I(f'v_lshlrev_b32 v{t+4}, 2, v{t+4}'); E.I(f'v_lshl_add_u32 v{t+4}, v{t+2}, 5, v{t+4}')
            E.I(f'v_and_b32 v{t+1}, 3, v{t}'); E.I(f'v_add_u32 v{t+1}, v{t+1}, v{t+4}')
    E.I(f's_mul_i32 s{S_TMP}, s{S_TYPE}, {4*384*4}'); E.I(f's_add_u32 s{S_TMP}, s{S_TMP}, {WS_SP}')
    E.I(f'v_lshlrev_b32 v{t+1}, 2, v{t+1}'); E.I(f'v_add_u32 v{V_SPA}, s{S_TMP}, v{t+1}')
    E.I(f'v_lshlrev_b32 v{t}, 2, v{t}'); E.I(f'v_add_u32 v{V_SFW}, {SFIN}, v{t}')
    if kind == 'V':
        E.I(f'v_and_b32 v{t}, 31, v{l}'); E.I(f'v_lshlrev_b32 v{t}, 2, v{t}'); E.I(f'v_add_u32 v{V_SA}, {SFIN}, v{t}')
    else:
        E.I(f'v_lshrrev_b32 v{t}, 5, v{l}'); E.I(f'v_lshlrev_b32 v{t}, 4, v{t}'); E.I(f'v_add_u32 v{V_SA}, {SFIN}, v{t}')

def setup_glu_a(E):
    l = V_LANE; t = V_T
    E.I(f's_and_b32 s{S_TMP}, s{S_WAVE}, 1'); E.I(f's_lshl_b32 s{S_TMP}, s{S_TMP}, 5')
    E.I(f's_lshr_b32 s{S_TMP+1}, s{S_WAVE}, 1'); E.I(f's_lshl_b32 s{S_TMP+1}, s{S_TMP+1}, 1')
    E.I(f'v_lshrrev_b32 v{t}, 3, v{l}')
    E.I(f'v_bfe_u32 v{t+1}, v{l}, 4, 1')
    E.I(f'v_or_b32 v{t+1}, s{S_TMP+1}, v{t+1}')
    E.I(f'v_bfe_u32 v{t+2}, v{l}, 1, 2')
    E.I(f'v_xor_b32 v{t+2}, v{t+2}, v{t+1}')
    E.I(f'v_lshlrev_b32 v{t+2}, 5, v{t+2}')
    E.I(f'v_and_b32 v{t+3}, 1, v{l}'); E.I(f'v_lshl_add_u32 v{t+2}, v{t+3}, 4, v{t+2}')
    E.I(f'v_add_u32 v{t}, s{S_TMP}, v{t}')
    E.I(f'v_mul_u32_u24 v{t}, 3456, v{t}')
    E.I(f'v_add_u32 v{V_WD}, v{t}, v{t+2}')
    for i in range(1, 4):
        E.I(f'v_add_u32 v{V_WD+i}, {i*(8*3456-1024)}, v{V_WD}')
    E.I(f's_lshl_b32 s{S_M0W}, s{S_WAVE}, 12')

def setup_glu_b(E):
    l = V_LANE; t = V_T
    E.I(f'v_bfe_u32 v{t}, v{l}, 4, 1')
    E.I(f'v_lshrrev_b32 v{t+1}, 5, v{l}')
    E.I(f'v_bfe_u32 v{t+2}, v{l}, 2, 2')
    E.I(f'v_and_b32 v{t+3}, 3, v{l}')
    E.I(f'v_lshl_add_u32 v{t+4}, v{t+1}, 3, v{t+2}')
    E.I(f'v_lshlrev_b32 v{t+4}, 7, v{t+4}')
    E.I(f'v_lshl_add_u32 v{t+4}, v{t}, 13, v{t+4}')
    E.I(f'v_and_b32 v{t+5}, 1, v{t+3}'); E.I(f'v_lshlrev_b32 v{t+5}, 1, v{t+5}')
    E.I(f'v_lshrrev_b32 v{t+6}, 1, v{t+3}'); E.I(f'v_add_u32 v{t+5}, v{t+5}, v{t+6}')
    E.I(f'v_lshl_add_u32 v{t+4}, v{t+5}, 3, v{t+4}')
    E.I(f'v_lshrrev_b32 v{t+5}, 1, v{t+2}')
    E.I(f'v_lshl_add_u32 v{t+5}, v{t}, 1, v{t+5}')
    for j in range(4):
        E.I(f'v_xor_b32 v{t+6}, {j}, v{t+5}')
        E.I(f'v_lshl_add_u32 v{V_TRLO+j}, v{t+6}, 5, v{t+4}')
        E.I(f'v_add_u32 v{V_TRHI+j}, {3*SLOT}, v{V_TRLO+j}')
    E.I(f's_lshl_b32 s{S_TMP}, s{S_RB}, 1'); E.I(f's_lshr_b32 s{S_TMP+1}, s{S_WAVE}, 1'); E.I(f's_add_u32 s{S_TMP}, s{S_TMP}, s{S_TMP+1}')
    E.I(f's_mul_i32 s{S_TMP}, s{S_TMP}, {NKS*4096}')
    E.I(f's_and_b32 s{S_TMP+1}, s{S_WAVE}, 1'); E.I(f's_lshl_b32 s{S_TMP+1}, s{S_TMP+1}, 11')
    E.I(f's_add_u32 s{S_TMP}, s{S_TMP}, s{S_TMP+1}'); E.I(f's_add_u32 s{S_TMP}, s{S_TMP}, {WS_ACT}')
    E.I(f'v_bfe_u32 v{t}, v{l}, 4, 1'); E.I(f'v_lshlrev_b32 v{t}, 10, v{t}')
    E.I(f'v_lshrrev_b32 v{t+1}, 5, v{l}'); E.I(f'v_lshl_add_u32 v{t}, v{t+1}, 8, v{t}')
    E.I(f'v_and_b32 v{t+1}, 15, v{l}'); E.I(f'v_lshl_add_u32 v{t}, v{t+1}, 4, v{t}')
    E.I(f'v_add_u32 v{V_ST}, s{S_TMP}, v{t}')


def setup_qkv_a(E):
    l = V_LANE; t = V_T
    E.I(f's_lshl_b32 s{S_TMP}, s{S_WAVE}, 4')
    for i in range(5):
        E.I(f'v_add_u32 v{t}, {64*i}, v{l}')
        E.I(f'v_mul_u32_u24 v{t+1}, 3277, v{t}'); E.I(f'v_lshrrev_b32 v{t+1}, 16, v{t+1}')
        E.I(f'v_mul_u32_u24 v{t+2}, 20, v{t+1}'); E.I(f'v_sub_u32 v{t+2}, v{t}, v{t+2}')
        E.I(f'v_add_u32 v{t+1}, s{S_TMP}, v{t+1}')
        E.I(f'v_mul_u32_u24 v{t+1}, 3840, v{t+1}')
        E.I(f'v_lshl_add_u32 v{V_WD+i}, v{t+2}, 4, v{t+1}')
        if 0 < i < 4: E.I(f'v_subrev_u32 v{V_WD+i}, {1024*i}, v{V_WD+i}')
    E.I(f's_mul_i32 s{S_M0W}, s{S_WAVE}, 5120')

def setup_qkv_b(E, isV):
    l = V_LANE; t = V_T
    E.I(f'v_lshrrev_b32 v{t+1}, 5, v{l}')
    E.I(f'v_bfe_u32 v{t+2}, v{l}, 2, 2')
    E.I(f'v_lshl_add_u32 v{t+4}, v{t+1}, 3, v{t+2}')
    E.I(f'v_mul_u32_u24 v{t+4}, 320, v{t+4}')
    E.I(f'v_bfe_u32 v{t}, v{l}, 4, 1'); E.I(f'v_and_b32 v{t+3}, 3, v{l}')
    E.I(f'v_lshl_add_u32 v{t+3}, v{t}, 2, v{t+3}')
    E.I(f'v_lshlrev_b32 v{t+5}, 2, v{t+3}')
    for j in range(5):
        perm = list(range(8)) if isV else PERM_QK[j]
        word = sum(perm[c] << (4*c) for c in range(8))
        E.I(f's_mov_b32 s{S_TMP}, {word}')
        E.I(f'v_lshrrev_b32 v{t+6}, v{t+5}, s{S_TMP}')
        E.I(f'v_and_b32 v{t+6}, 15, v{t+6}')
        E.I(f'v_lshl_add_u32 v{t+6}, v{t+6}, 3, v{t+4}')
        E.I(f'v_add_u32 v{V_TRLO+j}, {64*j}, v{t+6}')
        E.I(f'v_add_u32 v{V_TRHI+j}, {3*SLOT}, v{V_TRLO+j}')
    E.I(f's_lshl_b32 s{S_TMP}, s{S_RB}, 2'); E.I(f's_add_u32 s{S_TMP}, s{S_TMP}, s{S_WAVE}')
    if not isV:
        E.I(f's_lshl_b32 s{S_TMP+1}, s{S_TMP}, 10')
        E.I(f'v_lshlrev_b32 v{t}, 4, v{l}'); E.I(f'v_add_u32 v{V_ST}, s{S_TMP+1}, v{t}')
        E.I(f's_lshl_b32 s{S_TMP+1}, s{S_TMP}, 8')
        E.I(f'v_and_b32 v{t}, 31, v{l}'); E.I(f'v_lshlrev_b32 v{t}, 3, v{t}')
        E.I(f'v_lshrrev_b32 v{t+1}, 5, v{l}'); E.I(f'v_lshl_add_u32 v{t}, v{t+1}, 14, v{t}')
        E.I(f'v_add_u32 v{V_ST+1}, s{S_TMP+1}, v{t}')
    else:
        E.I(f's_mul_i32 s{S_TMP+1}, s{S_TMP}, {VT}')
        E.I(f'v_lshrrev_b32 v{t+3}, 5, v{l}'); E.I(f'v_mul_u32_u24 v{t+3}, 336, v{t+3}')
        E.I(f'v_add_u32 v{t+3}, s{S_TMP+1}, v{t+3}')
        E.I(f's_mov_b32 s{S_TMP+2}, {VH}')
        E.I(f'v_bfe_u32 v{t}, v{l}, 2, 3'); E.I(f'v_mul_lo_u32 v{t}, v{t}, s{S_TMP+2}')
        E.I(f'v_and_b32 v{t+1}, 3, v{l}'); E.I(f'v_mul_u32_u24 v{t+1}, 336, v{t+1}')
        E.I(f'v_add_u32 v{t}, v{t}, v{t+1}'); E.I(f'v_add_u32 v{t}, s{S_TMP+1}, v{t}')
        E.I(f'v_add_u32 v{V_ONE}, 320, v{t}')
        for i in range(4): E.I(f'v_mov_b32 v{V_T+16+i}, 0x3f803f80')
        for j in range(5):
            E.I(f'v_and_b32 v{t}, 31, v{l}'); E.I(f'v_add_u32 v{t}, {32*j}, v{t}')
            E.I(f'v_mul_u32_u24 v{t+1}, 3277, v{t}'); E.I(f'v_lshrrev_b32 v{t+1}, 16, v{t+1}')
            E.I(f'v_mul_u32_u24 v{t+2}, 20, v{t+1}'); E.I(f'v_sub_u32 v{t+2}, v{t}, v{t+2}')
            E.I(f'v_mul_lo_u32 v{t+1}, v{t+1}, s{S_TMP+2}')
            E.I(f'v_lshl_add_u32 v{t+1}, v{t+2}, 4, v{t+1}')
            E.I(f'v_add_u32 v{V_ST+j}, v{t+1}, v{t+3}')


def srows(p, j, ncols, buf):
    return [f'ds_read_b128 v[{V_SROW[buf]+4*g}:{V_SROW[buf]+4*g+3}], v{V_SA} offset:{(p*ncols + 32*j + 8*g)*4}' for g in range(4)]

def epi_glu(p, acc, soff):
    L = srows(p, 0, 128, 0)
    for j in range(4):
        g = acc + 16*j; u = g + 8; S = V_SROW[j & 1]
        if j < 3: L += srows(p, j + 1, 128, (j + 1) & 1)
        for i in range(16): L.append(f'v_fmac_f32 v{g+i}, v{V_NM}, v{S+i}')
        for i in range(8): L.append(f'v_mul_f32 v{g+i}, v{V_RS}, v{g+i}')
        for i in range(8): L.append(f'v_exp_f32 v{g+i}, v{g+i}')
        for i in range(8): L.append(f'v_fma_f32 v{g+i}, v{g+i}, v{V_RI}, v{V_RI}')
        for i in range(8): L.append(f'v_rcp_f32 v{g+i}, v{g+i}')
        for i in range(8): L.append(f'v_mul_f32 v{u+i}, v{u+i}, v{g+i}')
        for i in range(4): L.append(f'v_cvt_pk_bf16_f32 v{g+i}, v{u+2*i}, v{u+2*i+1}')
        L.append(f'buffer_store_dwordx4 v[{g}:{g+3}], v{V_ST}, s[{S_WS}:{S_WS+3}], s{soff + (j>>1)} offen offset:{(j&1)*512}{SC}')
    return L

def epi_qk(p, acc, soff1, soff2):
    L = srows(p, 0, 160, 0)
    tmp = [V_T, V_T+4, V_T+8, V_T+12]
    n = 0
    def slot(ts): return acc + 16*ts[0] + 4*ts[1]
    done = -1
    def need(tile):
        nonlocal done
        out = []
        while done < tile:
            done += 1; j = done
            if j < 4: out += srows(p, j + 1, 160, (j + 1) & 1)
            for i in range(16): out.append(f'v_fmac_f32 v{acc+16*j+i}, v{V_NM}, v{V_SROW[j&1]+i}')
        return out
    work = [('h', h, max(HEAD_SLOTS[h][0][0], HEAD_SLOTS[h][1][0])) for h in range(8)] + [('s', i, SINGLE_SLOTS[i][0]) for i in range(4)]
    work.sort(key=lambda w: w[2])
    for kind, h, tl in work:
        L += need(tl)
        d = tmp[n % 4]; n += 1
        if kind == 'h':
            a, b = slot(HEAD_SLOTS[h][0]), slot(HEAD_SLOTS[h][1])
            L += [f'v_mul_f32 v{r}, v{V_RS}, v{r}' for r in list(range(a, a+4)) + list(range(b, b+4))]
            L += [f'v_cvt_pk_bf16_f32 v{d}, v{a}, v{a+1}', f'v_cvt_pk_bf16_f32 v{d+1}, v{a+2}, v{a+3}',
                  f'v_cvt_pk_bf16_f32 v{d+2}, v{b}, v{b+1}', f'v_cvt_pk_bf16_f32 v{d+3}, v{b+2}, v{b+3}']
            L.append(f's_add_u32 s{S_TMP}, s{soff1}, {h*65536}')
            L.append(f'buffer_store_dwordx4 v[{d}:{d+3}], v{V_ST}, s[{S_WS}:{S_WS+3}], s{S_TMP} offen{SC}')
        else:
            a = slot(SINGLE_SLOTS[h])
            L += [f'v_mul_f32 v{r}, v{V_RS}, v{r}' for r in range(a, a+4)]
            L += [f'v_cvt_pk_bf16_f32 v{d}, v{a}, v{a+1}', f'v_cvt_pk_bf16_f32 v{d+1}, v{a+2}, v{a+3}']
            L.append(f's_add_u32 s{S_TMP}, s{soff2}, {h*32768}')
            L.append(f'buffer_store_dwordx2 v[{d}:{d+1}], v{V_ST+1}, s[{S_WS}:{S_WS+3}], s{S_TMP} offen{SC}')
    return L

def epi_v(p, acc, soff):
    L = [f'ds_read_b32 v{V_SCOL+j}, v{V_SA} offset:{(p*160 + 32*j)*4}' for j in range(5)]
    tmp = [V_T, V_T+4, V_T+8, V_T+12]
    n = 0
    for j in range(5):
        for i in range(16): L.append(f'v_fmac_f32 v{acc+16*j+i}, v{V_SROW[0]+i}, v{V_SCOL+j}')
        for i in range(16): L.append(f'v_mul_f32 v{acc+16*j+i}, v{V_SROW[1]+i}, v{acc+16*j+i}')
        for s in range(2):
            d = tmp[n % 4]; n += 1
            a = acc + 16*j + 8*s
            for i in range(4): L.append(f'v_cvt_pk_bf16_f32 v{d+i}, v{a+2*i}, v{a+2*i+1}')
            L.append(f'buffer_store_dwordx4 v[{d}:{d+3}], v{V_ST+j}, s[{S_WS}:{S_WS+3}], s{soff} offen offset:{672*s}{SC}')
    L.append(f'buffer_store_dwordx4 v[{V_T+16}:{V_T+19}], v{V_ONE}, s[{S_WS}:{S_WS+3}], s{soff} offen{SC}')
    return L

SAFE = ''
class Path:
    def __init__(self, E, kind, npanels):
        self.E = E; self.kind = kind; self.np = npanels
        self.NT = 4 if kind == 'G' else 5
        self.pitch = 128 if kind == 'G' else 320
        self.wpitch = 3456 if kind == 'G' else 3840
        self.nch = 10 * npanels
    def dma_w(self, cg):
        if cg >= self.nch: return []
        p, c = divmod(cg, 10)
        slot = cg % NSLOT
        L = []
        pb = 128 if self.kind == 'G' else 320
        L.append(('s', f's_add_u32 m0, s{S_M0W}, {slot*SLOT}'))
        L.append(('s', f's_add_u32 s{S_TMP+4}, s{S_WOFF}, {c*64*self.wpitch + p*pb}'))
        n = 4 if self.kind == 'G' else 5
        for i in range(n):
            if i == 4:
                L.append(('s', f's_add_u32 m0, s{S_M0W}, {slot*SLOT + 4096}'))
                L.append(('s', f's_add_u32 s{S_TMP+4}, s{S_WOFF}, {c*64*self.wpitch + p*pb}'))
                L.append(('W', f'buffer_load_dwordx4 v{V_WD+4}, s[{S_W}:{S_W+3}], s{S_TMP+4} offen lds'))
            else:
                L.append(('W', f'buffer_load_dwordx4 v{V_WD+i}, s[{S_W}:{S_W+3}], s{S_TMP+4} offen offset:{1024*i} lds'))
        return [(k, t, cg) for k, t in L]
    def dma_x(self, c):
        if c >= 10: return []
        L = [('s', f's_add_u32 m0, s{S_M0X}, {(c%3)*4096}'), ('s', f's_mov_b32 s{S_XOFF}, {c*128}')]
        for i in range(4):
            L.append(('X', f'buffer_load_dwordx4 v{V_XD+i}, s[{S_X}:{S_X+3}], s{S_XOFF} offen offset:{1024*i} lds'))
        return [(k, t, c) for k, t in L]
    def put(self, item):
        k, t, c = item
        self.E.I(t, tag=(k, c) if k != 's' else None)
    def xread(self, c):
        for s in range(4):
            self.E.I(f'ds_read_b128 a[{A_X+16*c+4*s}:{A_X+16*c+4*s+3}], v{V_XR+s} offset:{(c%3)*4096}')
        for s in range(4):
            self.E.I(f'ds_read_b128 v[{V_XC+4*s}:{V_XC+4*s+3}], v{V_XR+s} offset:{(c%3)*4096}')
    def wread(self, cg, s, j):
        slot = cg % NSLOT
        base = (V_TRLO if slot < 3 else V_TRHI) + j
        off = (slot % 3 if slot < 3 else slot - 3) * SLOT + s * 16 * self.pitch
        par = (cg*4 + s) & 1
        d = A_W + 20*par + 4*j
        return [f'ds_read_b64_tr_b16 a[{d}:{d+1}], v{base} offset:{off}',
                f'ds_read_b64_tr_b16 a[{d+2}:{d+3}], v{base} offset:{off + 4*self.pitch}']
    def job_dots(self):
        L = []
        for i in range(16):
            L.append(f'v_dot2c_f32_bf16 v{V_STA + (i&1)}, v{V_XC+i}, v{V_ONES}')
            L.append(f'v_dot2c_f32_bf16 v{V_STA + 2 + (i&1)}, v{V_XC+i}, v{V_XC+i}')
        return L
    def job_smfma(self):
        sp = 160 if self.kind != 'G' else 96
        rd = lambda s: [f'ds_read_b64_tr_b16 v[{V_SFR+4*(s&1)}:{V_SFR+4*(s&1)+1}], v{V_SR} offset:{16*s*sp}',
                        f'ds_read_b64_tr_b16 v[{V_SFR+4*(s&1)+2}:{V_SFR+4*(s&1)+3}], v{V_SR} offset:{16*s*sp + 4*sp}']
        G = [rd(0)]
        for s in range(10):
            g = (rd(s + 1) if s < 9 else [])
            C = '0' if s == 0 else f'v[{V_SACC}:{V_SACC+15}]'
            g = g + [f'v_mfma_f32_32x32x16_bf16 v[{V_SACC}:{V_SACC+15}], v[{V_ONES}:{V_ONES+3}], v[{V_SFR+4*(s&1)}:{V_SFR+4*(s&1)+3}], {C}']
            G.append(g)
        return G
    def job_stats(self):
        a = V_STA; t = V_T + 12
        L = ['s_nop 2', f'v_add_f32 v{a}, v{a}, v{a+1}', f'v_add_f32 v{a+2}, v{a+2}, v{a+3}',
             f'v_mov_b32 v{t}, v{a}', f'v_mov_b32 v{t+1}, v{a+2}',
             f'v_permlane32_swap_b32 v{a}, v{t}', f'v_permlane32_swap_b32 v{a+2}, v{t+1}',
             f'v_add_f32 v{a}, v{a}, v{t}', f'v_add_f32 v{a+2}, v{a+2}, v{t+1}',
             f'v_mul_f32 v{V_NM}, 0xbacccccd, v{a}',
             f'v_mul_f32 v{t}, v{V_NM}, v{V_NM}',
             f'v_mov_b32 v{t+1}, 0x3acccccd',
             f'v_fma_f32 v{t}, v{a+2}, v{t+1}, -v{t}',
             f'v_max_f32 v{t}, 0, v{t}',
             f'v_add_f32 v{t}, 0x3727c5ac, v{t}',
             f'v_rsq_f32 v{V_RS}, v{t}',
             f'v_sqrt_f32 v{V_RI}, v{t}']
        if self.kind == 'V':
            m = 89
            L += [f'v_and_b32 v{m}, 31, v{V_LANE}', f'v_lshlrev_b32 v{m}, 2, v{m}', f's_lshl_b32 s{S_TMP+5}, s{S_WAVE}, 8',
                  f's_add_u32 s{S_TMP+5}, s{S_TMP+5}, {MRS}', f'v_add_u32 v{m}, s{S_TMP+5}, v{m}',
                  f'ds_write_b32 v{m}, v{V_NM}', f'ds_write_b32 v{m}, v{V_RS} offset:128',
                  f'v_lshrrev_b32 v{m}, 5, v{V_LANE}', f'v_lshlrev_b32 v{m}, 4, v{m}', f'v_add_u32 v{m}, s{S_TMP+5}, v{m}']
            for g in range(4):
                L.append(f'ds_read_b128 v[{V_SROW[0]+4*g}:{V_SROW[0]+4*g+3}], v{m} offset:{32*g}')
                L.append(f'ds_read_b128 v[{V_SROW[1]+4*g}:{V_SROW[1]+4*g+3}], v{m} offset:{128 + 32*g}')
        elif self.kind == 'G': L.append(f'v_mul_f32 v{V_RS}, 0xbfb8aa3b, v{V_RS}')
        else: L.append(f'v_mul_f32 v{V_RS}, s{S_SCALE}, v{V_RS}')
        return L
    def emit(self, epi_fn):
        E = self.E; NT = self.NT; kind = self.kind
        ncol = 128 if kind == 'G' else 160
        slow = []
        stamp(E)
        E.wait_tag(('W', 0)); E.I('s_barrier')
        stamp(E)
        self.xread(0)
        for j in range(NT):
            for t in self.wread(0, 0, j): E.I(t)
        pending_epi = []
        SPUB = 5
        for p in range(self.np):
            acc = ACC[p & 1]
            nslots = 10*4*NT
            slot_i = 0
            epi = pending_epi
            epi_start = NT + 2 if p != 1 else (FCHK + 3 - 10)*4*NT + 1
            for c in range(10):
                cg = 10*p + c
                dq = []
                pre = []
                side = []
                if cg == SPUB: pre.append((f'buffer_store_byte v{V_T+13}, v{V_FO}, s[{S_DBG}:{S_DBG+3}], 0 offen sc1', None))
                if cg == FCHK: pre.append((f'buffer_load_dword v{V_FL}, v{V_FA}, s[{S_DBG}:{S_DBG+3}], 0 offen sc0 sc1', None))
                if cg == FCHK + 1:
                    for pp in range(self.np):
                        for kq in range(4):
                            pre.append((f'buffer_load_dword v{V_T + 4*pp + kq}, v{V_SPA}, s[{S_WS}:{S_WS+3}], {"s59" if kq >= 2 else "0"} offen offset:{(kq&1)*1536 + pp*(256 if kind == "G" else 640)} sc0 sc1', None))
                if p == 0: dq += self.dma_x(c + 3)
                dq += self.dma_w(cg + 3)
                if p == 0:
                    d = self.job_dots(); n = 3*NT - 1
                    side = [[] for _ in range(4*NT)]
                    for i, x in enumerate(d): side[1 + i*n//len(d)].append(x)
                    if cg == 2:
                        for i, g in enumerate(self.job_smfma()): side[2 + i] = side[2 + i] + g
                        side[4*NT - 1].append((f'buffer_store_dword v{V_SACC}, v{V_SST}, s[{S_WS}:{S_WS+3}], 0 offen sc1', 'SP'))
                    if cg == SPUB - 1: side[1].append(f'v_mov_b32 v{V_T+13}, 1')
                if cg == 10:
                    side = [[] for _ in range(4*NT)]
                    for i, x in enumerate(self.job_stats()): side[1 + i//2].append(x)
                if cg == FCHK + 2:
                    if not side: side = [[] for _ in range(4*NT)]
                    for pp in range(self.np):
                        q = V_T + 4*pp
                        side[2 + 2*pp] += [f'v_add_f32 v{q}, v{q}, v{q+1}', f'v_add_f32 v{q+2}, v{q+2}, v{q+3}']
                        side[3 + 2*pp] += [f'v_add_f32 v{q}, v{q}, v{q+2}', f'ds_write_b32 v{V_SFW}, v{q} offset:{pp*ncol*4}']
                for t, tg in pre: E.I(t, tag=tg)
                for s in range(4):
                    last_step = (s == 3) and cg + 1 < self.nch
                    held = []
                    for j in range(NT):
                        if last_step and j == 2:
                            while dq: self.put(dq.pop(0))
                            if cg + 1 == SPUB: E.wait_tag('SP')
                            if cg == FCHK:
                                E.I(f'v_cmp_ne_u32 vcc, 0x01010101, v{V_FL}')
                                E.I('s_nop 4'); E.I(f's_cbranch_vccnz K1_SPIN_{kind}'); E.label(f'K1_GO_{kind}')
                                SAFE = f's_add_u32 s58, s58, 1\ns_cmp_gt_u32 s58, 100000\ns_cbranch_scc1 K1_GO_{kind}\n' if OPT('SAFE') else ''
                                slow.append(f'''K1_SPIN_{kind}:
buffer_load_dword v{V_FL}, v{V_FA}, s[{S_DBG}:{S_DBG+3}], 0 offen sc0 sc1
s_waitcnt vmcnt(0)
v_cmp_ne_u32 vcc, 0x01010101, v{V_FL}
s_nop 4
{SAFE}s_cbranch_vccnz K1_SPIN_{kind}
s_branch K1_GO_{kind}
''')
                            E.wait_tag(('W', cg + 1)); E.waitcnt(lg=0); E.I('s_barrier')
                            if p == 0 and c + 1 < 10: self.xread(c + 1)
                            for t in held: E.I(t)
                            held = []
                        ks = 4*c + s
                        wf = A_W + 20*((cg*4 + s) & 1) + 4*j
                        xf = A_X + 4*ks
                        d = acc + 16*j
                        srcC = '0' if ks == 0 else f'v[{d}:{d+15}]'
                        if kind == 'V':
                            E.I(f'v_mfma_f32_32x32x16_bf16 v[{d}:{d+15}], a[{xf}:{xf+3}], a[{wf}:{wf+3}], {srcC}')
                        else:
                            E.I(f'v_mfma_f32_32x32x16_bf16 v[{d}:{d+15}], a[{wf}:{wf+3}], a[{xf}:{xf+3}], {srcC}')
                        if s < 3: nxt = (cg, s + 1)
                        else: nxt = (cg + 1, 0)
                        if nxt[0] < self.nch:
                            rd = self.wread(nxt[0], nxt[1], j)
                            if last_step and j < 2: held += rd
                            else:
                                for t in rd: E.I(t)
                        slot_c = s*NT + j
                        if dq and slot_c > 0:
                            it = dq.pop(0); self.put(it)
                            while it[0] == 's' and dq:
                                it = dq.pop(0); self.put(it)
                        if side:
                            for x in side[slot_c]:
                                if isinstance(x, tuple): E.I(x[0], tag=x[1])
                                else: E.I(x)
                        if epi and slot_i >= epi_start:
                            rem = nslots - 4 - slot_i
                            k = max(1, -(-len(epi) // max(rem, 1)))
                            for _ in range(min(k, len(epi))): E.I(epi.pop(0))
                        slot_i += 1
            while epi: E.I(epi.pop(0))
            stamp(E)
            pending_epi = epi_fn(p, acc)
        for t in pending_epi: E.I(t)
        return slow

def spare_path(E):
    l = V_LANE; t = V_T; VA = 40; VB = 50; VC = 60; F = 96
    R = E.raw
    E.I(f's_load_dwordx2 s[60:61], s[0:1], {KA_WO}'); E.I(f's_load_dwordx2 s[62:63], s[0:1], {KA_WD}')
    E.I(f'v_and_b32 v{l}, 63, v0'); E.I(f'v_lshrrev_b32 v{t}, 6, v0'); E.I(f'v_readfirstlane_b32 s{S_WAVE}, v{t}')
    E.I(f'v_lshlrev_b32 v{t}, 4, v0'); E.I(f's_lshl_b32 s{S_TMP}, s{S_RB}, 8'); E.I(f's_add_u32 s{S_TMP}, s{S_TMP}, {WS_FLG}')
    E.I(f'v_add_u32 v{t}, s{S_TMP}, v{t}'); E.I(f'v_mov_b32 v{t+1}, {OOB}'); E.I('v_cmp_gt_u32 vcc, 16, v0'); E.I(f'v_cndmask_b32 v{t}, v{t+1}, v{t}, vcc')
    for i in range(4): E.I(f'v_mov_b32 v{t+4+i}, 0')
    E.I(f'buffer_store_dwordx4 v[{t+4}:{t+7}], v{t}, s[{S_WS}:{S_WS+3}], 0 offen sc1')
    E.waitcnt(lg=0)
    srd(E, 64, 60, 61, 640*1280); srd(E, 68, 62, 63, 1728*1280)
    E.I(f's_mul_i32 s{S_TMP}, s{S_WAVE}, 640')
    for i in range(10):
        q = t;
        E.I(f'v_add_u32 v{q}, s{S_TMP}, v{l}')
        if i: E.I(f'v_add_u32 v{q}, {64*i}, v{q}')
        E.I(f'v_lshlrev_b32 v{VA+i}, 4, v{q}')
        E.I(f'v_mul_u32_u24 v{t+1}, 52429, v{q}'); E.I(f'v_lshrrev_b32 v{t+1}, 22, v{t+1}')
        E.I(f'v_mul_u32_u24 v{t+2}, 80, v{t+1}'); E.I(f'v_sub_u32 v{t+2}, v{q}, v{t+2}')
        E.I(f'v_lshrrev_b32 v{t+3}, 3, v{t+1}')
        E.I(f'v_and_b32 v{t+4}, 3, v{t+1}'); E.I(f'v_bfe_u32 v{t+5}, v{t+1}, 2, 1')
        E.I(f'v_lshrrev_b32 v{t+6}, 1, v{t+3}'); E.I(f'v_mul_u32_u24 v{t+6}, 20, v{t+6}')
        E.I(f'v_and_b32 v{t+7}, 1, v{t+3}'); E.I(f'v_lshl_add_u32 v{t+6}, v{t+7}, 2, v{t+6}')
        E.I(f'v_add_u32 v{t+6}, v{t+6}, v{t+4}'); E.I(f'v_lshl_add_u32 v{t+6}, v{t+5}, 3, v{t+6}')
        E.I(f'v_mul_u32_u24 v{t+6}, 1280, v{t+6}'); E.I(f'v_lshl_add_u32 v{VB+i}, v{t+2}, 4, v{t+6}')
        E.I(f'v_mul_u32_u24 v{t+6}, 40, v{t+3}'); E.I(f'v_mul_u32_u24 v{t+7}, 20, v{t+5}'); E.I(f'v_add_u32 v{t+6}, v{t+6}, v{t+7}')
        E.I(f'v_add_u32 v{t+6}, v{t+6}, v{t+4}'); E.I(f'v_add_u32 v{t+6}, 16, v{t+6}')
        E.I(f'v_mul_u32_u24 v{t+6}, 1280, v{t+6}'); E.I(f'v_lshl_add_u32 v{VC+i}, v{t+2}, 4, v{t+6}')
        if i & 3:
            for b in (VA, VB, VC): E.I(f'v_subrev_u32 v{b+i}, {1024*(i&3)}, v{b+i}')
    E.I(f'v_lshrrev_b32 v{t}, 4, v{l}'); E.I(f'v_bfe_u32 v{t+1}, v{l}, 2, 2'); E.I(f'v_lshl_add_u32 v{t}, v{t}, 3, v{t+1}')
    E.I(f'v_mul_u32_u24 v{t}, 1280, v{t}'); E.I(f'v_and_b32 v{t+1}, 3, v{l}'); E.I(f'v_lshl_add_u32 v{t}, v{t+1}, 3, v{t}')
    E.I(f's_mul_i32 s{S_TMP}, s{S_WAVE}, 320'); E.I(f'v_add_u32 v70, s{S_TMP}, v{t}')
    E.I(f'v_add_u32 v71, 40960, v70'); E.I(f'v_add_u32 v72, 81920, v70'); E.I(f'v_add_u32 v73, 122880, v70')
    E.I(f'v_lshlrev_b32 v74, 4, v{l}')
    E.I(f's_mul_i32 s{S_M0W}, s{S_WAVE}, 10240')
    E.I(f's_mul_i32 s42, s{S_WAVE}, {2*74*5120}'); E.I(f's_add_u32 s42, s42, {WS_W3}')
    def dma(buf, v, srd_, soff):
        for i in range(10):
            if i % 4 == 0: R(f's_add_u32 m0, s{S_M0W}, {buf*40960 + 1024*i}\ns_nop 0')
            R(f'buffer_load_dwordx4 v{v+i}, s[{srd_}:{srd_+3}], s{soff} offen offset:{1024*(i&3)} lds')
    def proc(buf, kadd):
        R('s_waitcnt vmcnt(30)\ns_barrier')
        R(f's_add_u32 s44, s{S_RB}, {kadd}\ns_mul_i32 s44, s44, 5120\ns_add_u32 s44, s44, s42')
        for i in range(10):
            R(f'ds_read_b64_tr_b16 v[{F+4*i}:{F+4*i+1}], v{70+buf} offset:{32*i}')
            R(f'ds_read_b64_tr_b16 v[{F+4*i+2}:{F+4*i+3}], v{70+buf} offset:{32*i + 4*1280}')
        R('s_waitcnt lgkmcnt(0)')
        for i in range(10):
            R(f's_add_u32 s45, s44, {(i//5)*74*5120 + (i%5)*1024}')
            R(f'buffer_store_dwordx4 v[{F+4*i}:{F+4*i+3}], v74, s[{S_WS}:{S_WS+3}], s45 offen sc1')
    R('s_nop 4')
    R(f's_mul_i32 s43, s{S_RB}, 51200'); dma(0, VB, 64, 43)
    R(f's_cmp_lt_u32 s{S_RB}, 4\ns_cbranch_scc1 K1_SP_C')
    R(f's_sub_u32 s43, s{S_RB}, 4\ns_mul_i32 s43, s43, 40960'); dma(1, VA, 68, 43)
    R('s_branch K1_SP_D\nK1_SP_C:')
    R(f's_mul_i32 s43, s{S_RB}, 204800'); dma(1, VC, 64, 43)
    R('K1_SP_D:')
    for n in (2, 3):
        R(f's_add_u32 s43, s{S_RB}, {16*n - 20}\ns_mul_i32 s43, s43, 40960'); dma(n, VA, 68, 43)
    proc(0, 0)
    R(f's_cmp_ge_u32 s{S_RB}, 10\ns_cbranch_scc1 K1_SP_E')
    R('s_barrier')
    R(f's_add_u32 s43, s{S_RB}, 44\ns_mul_i32 s43, s43, 40960'); dma(0, VA, 68, 43)
    R('K1_SP_E:')
    proc(1, 16); proc(2, 32); proc(3, 48)
    R(f's_cmp_ge_u32 s{S_RB}, 10\ns_cbranch_scc1 K1_END')
    proc(0, 64)
    R('s_endpgm')

def gen_k1(name='k1_kernel'):
    E = Emitter()
    E.I('s_cmp_ge_u32 s2, 256'); E.I('s_cbranch_scc1 K1_END'); ts_begin(E)
    E.I(f's_load_dwordx2 s[4:5], s[0:1], {KA_WS}')
    E.I(f's_load_dwordx4 s[36:39], s[0:1], {KA_X}')
    E.I(f's_load_dwordx4 s[32:35], s[0:1], {KA_WG}')
    E.I(f's_load_dwordx2 s[48:49], s[0:1], {KA_DBG}')
    E.I('s_and_b32 s40, s2, 7'); E.I('s_lshr_b32 s41, s2, 3')
    E.I('s_and_b32 s42, s40, 1'); E.I('s_lshl_b32 s42, s42, 3'); E.I('s_and_b32 s43, s41, 7')
    E.I(f's_add_u32 s{S_RB}, s42, s43')
    E.I('s_lshr_b32 s42, s40, 1'); E.I('s_lshl_b32 s42, s42, 2'); E.I('s_lshr_b32 s43, s41, 3')
    E.I(f's_add_u32 s{S_TYPE}, s42, s43')
    E.waitcnt(lg=0)
    srd(E, S_WS, 4, 5, WS_SIZE)
    E.I(f's_cmp_eq_u32 s{S_TYPE}, 15'); E.I('s_cbranch_scc1 K1_SPARE')
    srd(E, S_X, 36, 37, 2048*1280)
    srd(E, S_DBG, 48, 49, 256)
    E.I('s_mov_b32 s59, 3072')
    if OPT('SAFE'): E.I('s_mov_b32 s58, 0')
    common_a(E)
    E.I(f's_cmp_ge_u32 s{S_TYPE}, 6'); E.I('s_cbranch_scc1 K1_GLU')
    slow = []
    def prologue(P, kind):
        for c in range(2):
            for it in P.dma_x(c): P.put(it)
            for it in P.dma_w(c): P.put(it)
        sblk_setup(E, kind)
        for it in P.dma_x(2): P.put(it)
        for it in P.dma_w(2): P.put(it)
        common_b(E); sblk_addr(E, kind)
    srd(E, S_W, 38, 39, 640*3840)
    E.I(f's_mul_i32 s{S_WOFF}, s{S_TYPE}, 640')
    setup_qkv_a(E)
    P = Path(E, 'Q', 2); prologue(P, 'Q')
    E.I(f's_cmp_ge_u32 s{S_TYPE}, 4'); E.I('s_cbranch_scc1 K1_V')
    import copy
    keep = ('pos', 'vm', 'lg', 'sm', 'vm_n', 'lg_n', 'last', 'lastC', 'laststore')
    snap = {k: copy.deepcopy(getattr(E, k)) for k in keep}
    setup_qkv_b(E, False); sfin_setup(E, 'Q')
    E.I(f's_and_b32 s42, s{S_TYPE}, 1'); E.I('s_lshl_b32 s42, s42, 4')
    E.I(f's_cmp_lt_u32 s{S_TYPE}, 2')
    E.I(f's_mov_b32 s45, {WS_KF1}'); E.I(f's_cselect_b32 s43, {WS_QF1}, s45')
    E.I(f's_mov_b32 s45, {WS_KF2}'); E.I(f's_cselect_b32 s44, {WS_QF2}, s45')
    E.I(f's_mov_b32 s45, 1.0'); E.I(f's_cselect_b32 s{S_SCALE}, {QSCALE}, s45')
    E.I('s_lshl_b32 s45, s42, 16'); E.I('s_add_u32 s43, s43, s45')
    E.I('s_lshl_b32 s45, s42, 14'); E.I('s_add_u32 s44, s44, s45')
    E.I(f's_add_u32 s46, s43, {8*65536}'); E.I(f's_add_u32 s47, s44, {8*16384}')
    slow += P.emit(lambda p, acc: epi_qk(p, acc, 43 + 3*p, 44 + 3*p))
    ts_end(E, 1, 4, 5)
    E.I('s_endpgm')
    E.label('K1_V')
    for k in keep: setattr(E, k, snap[k])
    E.I('s_nop 4')
    setup_qkv_b(E, True); sfin_setup(E, 'V')
    E.I(f's_and_b32 s42, s{S_TYPE}, 1'); E.I('s_lshl_b32 s42, s42, 4')
    E.I(f's_mul_i32 s43, s42, {VH}'); E.I(f's_add_u32 s43, s43, {WS_VF}')
    E.I(f's_add_u32 s44, s43, {8*VH}')
    E.nstamp = 1
    P = Path(E, 'V', 2)
    slow += P.emit(lambda p, acc: epi_v(p, acc, 43 + p))
    ts_end(E, 1, 4, 5)
    E.I('s_endpgm')
    E.label('K1_GLU'); E.reset_state(); E.I('s_nop 4')
    E.I(f's_cmp_lt_u32 s{S_WAVE}, 2')
    E.I('s_cselect_b32 s40, s32, s34'); E.I('s_cselect_b32 s41, s33, s35')
    srd(E, S_W, 40, 41, 640*3456)
    setup_glu_a(E)
    E.I(f's_sub_u32 s42, s{S_TYPE}, 6'); E.I('s_mul_i32 s42, s42, 3')
    E.I(f's_lshl_b32 s{S_WOFF}, s42, 7')
    P = Path(E, 'G', 3); prologue(P, 'G')
    setup_glu_b(E); sfin_setup(E, 'G')
    for p in range(3):
        E.I(f's_add_u32 s45, s42, {p}'); E.I('s_lshl_b32 s45, s45, 1'); E.I('s_add_u32 s45, s45, 20')
        E.I(f's_lshl_b32 s{46+2*p}, s45, 12'); E.I(f's_add_u32 s{47+2*p}, s{46+2*p}, 4096')
    E.nstamp = 1
    slow += P.emit(lambda p, acc: epi_glu(p, acc, 46 + 2*p))
    ts_end(E, 1, 4, 5)
    E.I('s_endpgm')
    for x in slow: E.raw(x)
    E.label('K1_SPARE'); E.reset_state(); E.I('s_nop 4')
    spare_path(E)
    E.label('K1_END')
    import sys
    from collections import Counter
    print('k1p nops', E.nops, E.count, Counter(w.split('@')[0] for n, w in E.nop_log).most_common(8), file=sys.stderr)
    return kernel_text(name, E.text(), 512, 256)
```

```python
import sys, importlib
from common import *
import os, k0, k1, k1p, k2, k3, k23, k23b
MAIN = 'parallel_sum__sliding_block__glu_gated_glu__prompt_kernel'
HDR = open('parallel_sum__sliding_block__glu_gated_glu__prompt.s.ref').read().split('\n')
hdr = [l for l in HDR[:11]]
def build(launches, kernels):
    out = list(hdr)
    for (k, g, b, lds) in launches:
        out.append(f'; @launch kernel={k} grid=({g},1,1) block=({b},1,1) lds={lds}')
    out.append('.amdgcn_target "amdgcn-amd-amdhsa--gfx950"')
    return '\n'.join(out) + '\n' + '\n'.join(kernels)
if __name__ == '__main__':
    dst = sys.argv[1] if len(sys.argv) > 1 else 'parallel_sum__sliding_block__glu_gated_glu__prompt.s'
    ks = [k0.gen_k0('k0_kernel'), k1.gen_k1('k1_kernel'), k23b.gen_k23b(MAIN)] if os.environ.get('NOK0', '1') != '1' else None
    L = [('k0_kernel', 996, 256, 0), ('k1_kernel', 256, 256, k1.LDS_BYTES), (MAIN, 256, 512, k23b.LDS_BYTES)]
    if os.environ.get('NOK0', '1') == '1':
        ks = [k1p.gen_k1('k1_kernel'), k23b.gen_k23b(MAIN)]
        L = [('k1_kernel', 256, 256, k1p.LDS_BYTES), (MAIN, 256, 512, k23b.LDS_BYTES)]
    s = build(L, ks)
    open(dst, 'w').write(s)
    print('size', len(s))
```
